```python
import torch

def _softmax(x, axis=-1):
    return torch.softmax(x, dim=axis)
def _gelu(x):
    return torch.nn.functional.gelu(x, approximate="tanh")
def _silu(x):
    return torch.nn.functional.silu(x)
def _sigmoid(x):
    return torch.sigmoid(x)
def _layernorm(x, axis=-1, eps=1e-5):
    m = x.mean(dim=axis, keepdim=True)
    v = x.var(dim=axis, keepdim=True, unbiased=False)
    return (x - m) / torch.sqrt(v + eps)
def _scatter_add(tgt, idx, src, axis=0):
    return tgt.clone().index_add_(axis, idx, src)
def _segment_sum(src, seg, n):
    out = torch.zeros((n,) + src.shape[1:], dtype=src.dtype)
    return out.index_add_(0, seg, src)
def _pad(x, pw):
    flat = tuple(v for pair in reversed(pw) for v in pair)
    return torch.nn.functional.pad(x, flat)

kernel_name = 'parallel_sum__ssm_conv_s5__glu_gated_swiglu__prompt'

def setup_inputs():

    _w = (lambda a: (lambda t: t.to(torch.bfloat16) if t.is_floating_point() else t)(torch.as_tensor(a)))
    def _A_setup():
        B, S, D = 1, 2048, 512
        P = D
        Lambda_re = -0.5 * (lambda _x: torch.exp(torch.as_tensor(_x)))((lambda *s: torch.randn(*s, dtype=torch.bfloat16) * 0.2)(P))
        Lambda_im = (lambda *s: torch.randn(*s, dtype=torch.bfloat16) * 0.8)(P) * 1.0
        B_re = (lambda *s: torch.randn(*s, dtype=torch.bfloat16) * 0.2)(P, D) * (D ** -0.5)
        B_im = (lambda *s: torch.randn(*s, dtype=torch.bfloat16) * 0.2)(P, D) * (D ** -0.5)
        C_re = (lambda *s: torch.randn(*s, dtype=torch.bfloat16) * 0.2)(D, P) * (P ** -0.5)
        C_im = (lambda *s: torch.randn(*s, dtype=torch.bfloat16) * 0.2)(D, P) * (P ** -0.5)
        log_dt = (lambda *s: torch.randn(*s, dtype=torch.bfloat16) * 0.2)(P) * 0.3 - 2.0
        Dskip = (lambda *s: torch.randn(*s, dtype=torch.bfloat16) * 0.05)(D)
        return {
            "x": _w((lambda *s: torch.randn(*s, dtype=torch.bfloat16) * 0.05)(B, S, D)),
            "Lambda_re": _w(Lambda_re),
            "Lambda_im": _w(Lambda_im),
            "B_re": _w(B_re),
            "B_im": _w(B_im),
            "C_re": _w(C_re),
            "C_im": _w(C_im),
            "log_dt": _w(log_dt),
            "Dskip": _w(Dskip),
        }
    _A_in = _A_setup()

    def _B_setup():
        B, S, D, F = 1, 2048, 512, 1792
        return {
            "x": _w((lambda *s: torch.randn(*s, dtype=torch.bfloat16) * 0.05)(B, S, D)),
            "w1": _w((lambda *s: torch.randn(*s, dtype=torch.bfloat16) * 0.4)(D, F) * (2.0 / D) ** 0.5),
            "w3": _w((lambda *s: torch.randn(*s, dtype=torch.bfloat16) * 0.4)(D, F) * (2.0 / D) ** 0.5),
            "w2": _w((lambda *s: torch.randn(*s, dtype=torch.bfloat16) * 0.4)(F, D) * (2.0 / F) ** 0.5),
        }
    _B_in = _B_setup()

    return {
        "A_x": _A_in["x"],
        "A_Lambda_re": _A_in["Lambda_re"],
        "A_Lambda_im": _A_in["Lambda_im"],
        "A_B_re": _A_in["B_re"],
        "A_B_im": _A_in["B_im"],
        "A_C_re": _A_in["C_re"],
        "A_C_im": _A_in["C_im"],
        "A_log_dt": _A_in["log_dt"],
        "A_Dskip": _A_in["Dskip"],
        "B_x": _B_in["x"],
        "B_w1": _B_in["w1"],
        "B_w3": _B_in["w3"],
        "B_w2": _B_in["w2"],
    }

def reference(A_x, A_Lambda_re, A_Lambda_im, A_B_re, A_B_im, A_C_re, A_C_im, A_log_dt, A_Dskip, B_x, B_w1, B_w3, B_w2):
    def _A_ref(x, Lambda_re, Lambda_im, B_re, B_im, C_re, C_im, log_dt, Dskip):
        Bsz, L, H = x.shape
        Lam = Lambda_re + 1j * Lambda_im
        Bmat = B_re + 1j * B_im
        Cmat = C_re + 1j * C_im
        dt = torch.exp(log_dt)
        Lam_bar = torch.exp(dt * Lam)
        B_bar = ((Lam_bar - 1.0) / Lam)[:, None] * Bmat
        Bu = torch.einsum("bld,pd->blp", x + 0j, B_bar)
        h = torch.zeros_like(Bu[:, 0, :])
        hs = []
        for t in range(L):
            h = Lam_bar[None, :] * h + Bu[:, t, :]
            hs.append(h)
        hseq = torch.stack(hs, 1)
        y = 2.0 * torch.einsum("blp,dp->bld", hseq, Cmat).real + x * Dskip[None, None, :]
        return y

    def _B_ref(x, w1, w3, w2):
        gate = torch.einsum("bsd,df->bsf", x, w1)
        up = torch.einsum("bsd,df->bsf", x, w3)
        h = _silu(gate) * up
        out = torch.einsum("bsf,fd->bsd", h, w2)
        return out

    x = A_x
    xn = _layernorm(x, axis=-1)
    return x + _A_ref(xn, A_Lambda_re, A_Lambda_im, A_B_re, A_B_im, A_C_re, A_C_im, A_log_dt, A_Dskip) + _B_ref(xn, B_w1, B_w3, B_w2)
```

```python
NROW=2048; D=512; P=512; F=1792
NKS = 176
OFF_ACT = 0
SZ_ACT = 64*NKS*1024
OFF_WT = OFF_ACT + SZ_ACT
SZ_WT = 16*NKS*1024
OFF_ST = OFF_WT + SZ_WT
SZ_ST = 2048*8
OFF_CS = OFF_ST + SZ_ST
SZ_CS = 16*3*16*512
OFF_E = OFF_CS + SZ_CS
SZ_E = 16*16*512
OFF_DN = OFF_E + SZ_E
SZ_DN = 256*16
WS_USED = OFF_DN + SZ_DN
OFF_TS = 32<<20
import os
DIAG = int(os.environ.get('DIAG','0'))

KA = dict(x=0, lre=8, lim=16, bre=24, bim=32, cre=40, cim=48, ldt=56, dsk=64, bx=72, w1=80, w3=88, w2=96, out=104, dbg=112, ws=120)

class Em:
    def __init__(self):
        self.L = []
        self.vm = 0
        self.lg = 0
        self.vm_done = 0
        self.lg_done = 0
    def e(self, s): self.L.append("    " + s)
    def c(self, s): self.L.append("    ; " + s)
    def lab(self, s): self.L.append(s + ":")
    def vmem(self, s):
        self.e(s); self.vm += 1; return self.vm - 1
    def lds(self, s):
        self.e(s); self.lg += 1; return self.lg - 1
    def wait_vm(self, seq):
        if seq < self.vm_done: return
        n = self.vm - 1 - seq
        assert n <= 63, n
        self.e(f"s_waitcnt vmcnt({n})"); self.vm_done = seq + 1
    def wait_lg(self, seq):
        if seq < self.lg_done: return
        n = self.lg - 1 - seq
        if n > 15:
            n = 15
            self.lg_done = self.lg - 15
            self.e(f"s_waitcnt lgkmcnt({n})"); return
        self.e(f"s_waitcnt lgkmcnt({n})"); self.lg_done = seq + 1
    def wait_all(self):
        self.e("s_waitcnt vmcnt(0) lgkmcnt(0)"); self.vm_done = self.vm; self.lg_done = self.lg
    def text(self): return "\n".join(self.L) + "\n"

def srd(em, s, base_lo, base_hi, size, add=0):
    if add:
        em.e(f"s_add_u32 s{s}, s{base_lo}, {add}")
        em.e(f"s_addc_u32 s{s+1}, s{base_hi}, 0")
    else:
        em.e(f"s_mov_b32 s{s}, s{base_lo}")
        em.e(f"s_mov_b32 s{s+1}, s{base_hi}")
    em.e(f"s_mov_b32 s{s+2}, {size}")
    em.e(f"s_mov_b32 s{s+3}, 0x00020000")

def kd(name, vgpr, sgpr=102, accum=None):
    if accum is None: accum = (vgpr + 3)//4*4
    return f""".p2align 6
.amdhsa_kernel {name}
  .amdhsa_next_free_vgpr {vgpr}
  .amdhsa_next_free_sgpr {sgpr}
  .amdhsa_accum_offset {accum}
  .amdhsa_group_segment_fixed_size 0
  .amdhsa_kernarg_size 128
  .amdhsa_user_sgpr_count 2
  .amdhsa_user_sgpr_kernarg_segment_ptr 1
  .amdhsa_system_sgpr_workgroup_id_x 1
.end_amdhsa_kernel
"""
```

```python
from common import *
import os
U = 4096
SLAB = [0, 8*U, 16*U, 24*U]
MREG = 32*U
MISC = 38*U
L_NONCE = MISC
L_SEG = MISC + 64
L_RS = MISC + 64 + 2048
LDS_TOTAL = 40*U
def X_base(kb): return SLAB[kb % 4]
def S0_base(kb): return SLAB[kb % 4] + 4*U
def A0_base(kb): return SLAB[kb % 4] + 6*U
W1_base = [MREG, SLAB[0], SLAB[1], SLAB[2]]
W2_base = [SLAB[0]+6*U, SLAB[1]+6*U, SLAB[2]+6*U, SLAB[3], SLAB[3]+2*U, SLAB[3]+4*U, SLAB[3]+6*U, MREG]
HT_base = SLAB[0]
O_ST, O_CS, O_E = 0, SZ_ST, SZ_ST + SZ_CS
NFILL = int(os.environ.get("NFILL", "5"))

def rng(r, n): return f"v[{r}:{r+n-1}]"

class Stream:
    def __init__(self, em):
        self.em = em; self.q = []; self.events = set()
    def add(self, items): self.q.extend(items)
    def signal(self, ev): self.events.add(ev)
    def _one(self):
        while self.q:
            it = self.q[0]
            if isinstance(it, tuple) and it[0] == "after":
                if it[1] in self.events: self.q.pop(0); continue
                return False
            if isinstance(it, tuple) and it[0] == "mark":
                self.q.pop(0); self.events.add("done:" + it[1]); continue
            self.q.pop(0)
            for x in (it if isinstance(it, list) else [it]):
                if callable(x): x(self.em)
                else: self.em.e(x)
            return True
        return False
    def fill(self, n):
        for _ in range(n):
            if not self._one(): break
    def flush_until(self, mark):
        while ("done:" + mark) not in self.events:
            if not self._one():
                if ("done:" + mark) in self.events: break
                raise RuntimeError(f"blocked flushing until {mark}: head {self.q[0] if self.q else None}")
    def flush(self):
        while self.q:
            if not self._one():
                if self.q: raise RuntimeError(f"blocked: {self.q[0]}")

VPI, VRS, VLANE16 = 16, 17, 27
VLRE, VLIM, VLDT = 1, 18, 19
VX0, VX1, VSB, VT2, VT3D = 20, 21, 22, 23, 24
VXR = 28; VXM = 28
VBR = 32
VT2A, VT2B, VT3R, VT3W = 36, 37, 38, 39
WR = 40
XF = 128
def xf(ks): return XF + 4*ks
STAG = 70

def dma(em, srdreg, voff, soff_base, soff_add, m0_sreg, m0_add):
    em.e(f"s_add_u32 m0, s{m0_sreg}, {m0_add}")
    if soff_base is None: em.e(f"s_mov_b32 s84, {soff_add}")
    else: em.e(f"s_add_u32 s84, s{soff_base}, {soff_add}")
    return em.vmem(f"buffer_load_dwordx4 v{voff}, s[{srdreg}:{srdreg+3}], s84 offen lds")
def dma_X(em, kb):
    dma(em, 8, VX0, 78, kb*128, 76, X_base(kb))
    return dma(em, 8, VX1, 78, kb*128, 76, X_base(kb) + 1024)
def dma_S0(em, kb): return dma(em, 12, VSB, None, kb*128, 75, S0_base(kb))
def dma_T2(em, kb, base, sreg): return dma(em, 16, VT2, sreg, kb*64*3584, 75, base)
def dma_T3(em, u):
    for i in range(3): sq = dma(em, 16, VT3D+i, 81, u*128*3584, 77, W1_base[u] + i*1024)
    return sq
def dma_stage(em, kb):
    dma_X(em, kb); dma_S0(em, kb); return dma_T2(em, kb, A0_base(kb), 80)

slow_paths = []
SPIN_MAX = 20000
def tagged_load(em, pre, insts, tagregs, label, maskpre=None):
    for p in pre: em.e(p)
    seqs = [em.vmem(i) for i in insts]
    def cmp_code():
        out = []
        for n, t in enumerate(tagregs):
            dst = "vcc" if n == 0 else "s[90:91]"
            out.append(f"v_cmp_ne_u32 {dst}, s{STAG}, v{t}")
            if maskpre is not None:
                out += maskpre(n)
                out.append(f"s_and_b64 {dst}, {dst}, s[92:93]")
            if n: out.append("s_or_b64 vcc, vcc, s[90:91]")
        return out
    def check(em2):
        em2.wait_vm(seqs[-1])
        for i in cmp_code(): em2.e(i)
        em2.e(f"s_cbranch_vccnz {label}_SLOW")
        em2.lab(f"{label}_OK")
        sp = [f"{label}_SLOW:", "    s_sleep 1"]
        sp += ["    " + i for i in pre] + ["    " + i for i in insts]
        sp.append("    s_waitcnt vmcnt(0)")
        sp += ["    " + i for i in cmp_code()]
        sp.append(f"    s_cbranch_vccz {label}_OK")
        sp.append("    s_add_u32 s32, s32, 1")
        sp.append(f"    s_cmp_lt_u32 s32, {SPIN_MAX}")
        sp.append(f"    s_cbranch_scc1 {label}_SLOW")
        sp.append(f"    s_branch {label}_OK")
        slow_paths.append("\n".join(sp))
    return check

def gen_k1(name="k1_kernel"):
    slow_paths.clear()
    top = Em(); e = top.e
    top.L.append(f".globl {name}\n.p2align 8\n.type {name},@function\n{name}:")
    e("s_cmp_ge_u32 s2, 256")
    e("s_cbranch_scc1 K1_END")
    if DIAG: e("s_memrealtime s[96:97]"); e("s_memtime s[98:99]")
    e("s_mov_b32 s32, 0")
    e("s_load_dwordx16 s[36:51], s[0:1], 0")
    e("s_load_dwordx16 s[52:67], s[0:1], 64")
    e("v_lshrrev_b32 v1, 6, v0")
    e("v_and_b32 v0, 63, v0")
    e("s_nop 0")
    e("v_readfirstlane_b32 s3, v1")
    e("s_and_b32 s72, s2, 7"); e("s_lshr_b32 s73, s2, 3")
    e("s_lshr_b32 s6, s72, 1"); e("s_lshl_b32 s6, s6, 2"); e("s_lshr_b32 s74, s73, 3"); e("s_add_u32 s6, s6, s74")
    e("s_and_b32 s7, s72, 1"); e("s_lshl_b32 s7, s7, 3"); e("s_and_b32 s74, s73, 7"); e("s_add_u32 s7, s7, s74")
    e("s_and_b32 s4, s3, 3"); e("s_lshr_b32 s5, s3, 2")
    e("s_lshl_b32 s75, s3, 10"); e("s_lshl_b32 s76, s3, 11")
    e("s_mul_i32 s77, s5, 12288"); e("s_mul_i32 s74, s4, 3072"); e("s_add_u32 s77, s77, s74")
    e("s_lshl_b32 s78, s6, 17")
    e("s_mul_i32 s79, s7, 224"); e("s_and_b32 s74, s7, 1")
    for sreg, ev, od in ((80, 0, 96), (81, 128, 0), (82, 64, 160)):
        e("s_cmp_eq_u32 s74, 0"); e(f"s_cselect_b32 s{sreg}, {ev}, {od}"); e(f"s_add_u32 s{sreg}, s{sreg}, s79")
    e("v_lshrrev_b32 v2, 3, v0"); e("v_and_b32 v3, 7, v0"); e("v_lshrrev_b32 v4, 1, v2"); e("v_xor_b32 v5, v3, v4")
    e("s_lshl_b32 s74, s3, 14")
    e("v_lshlrev_b32 v6, 10, v2"); e("v_lshl_add_u32 v6, v5, 4, v6"); e(f"v_add_u32 v{VX0}, s74, v6")
    e("v_xor_b32 v7, 4, v5"); e("v_lshlrev_b32 v8, 10, v2"); e("v_lshl_add_u32 v8, v7, 4, v8")
    e("s_add_u32 s83, s74, 8192"); e(f"v_add_u32 v{VX1}, s83, v8")
    e("s_and_b32 s74, s4, 1"); e("s_lshl_b32 s74, s74, 2"); e("v_xor_b32 v7, s74, v5")
    e("v_lshlrev_b32 v8, 10, v2"); e("v_lshl_add_u32 v8, v7, 4, v8")
    e("s_lshl_b32 s74, s7, 15"); e("s_lshl_b32 s83, s4, 13"); e("s_add_u32 s74, s74, s83"); e(f"v_add_u32 v{VSB}, s74, v8")
    e("v_lshrrev_b32 v6, 2, v0"); e("s_lshl_b32 s74, s4, 4"); e("v_add_u32 v6, s74, v6")
    e("s_movk_i32 s83, 3584"); e("v_mul_lo_u32 v6, v6, s83")
    e("v_and_b32 v7, 3, v0"); e("s_lshl_b32 s74, s5, 1"); e("v_xor_b32 v7, s74, v7"); e(f"v_lshl_add_u32 v{VT2}, v7, 4, v6")
    for u in range(3):
        e(f"v_add_u32 v6, {64*u}, v0"); e("s_mov_b32 s74, 0x2aaaaaab"); e("v_mul_hi_u32 v7, v6, s74")
        e("v_mul_u32_u24 v8, 6, v7"); e("v_sub_u32 v8, v6, v8")
        e("s_lshl_b32 s74, s4, 5"); e("v_add_u32 v7, s74, v7")
        e("s_lshl_b32 s74, s5, 2"); e("v_subrev_u32 v7, s74, v7"); e("v_and_b32 v7, 127, v7")
        e("v_mul_lo_u32 v7, v7, s83"); e(f"v_lshl_add_u32 v{VT3D+u}, v8, 4, v7")
    e(f"v_lshlrev_b32 v{VLANE16}, 4, v0")
    e("s_waitcnt lgkmcnt(0)")
    srd(top, 8, 36, 37, NROW*D*2)
    e("s_cmp_eq_u32 s5, 0")
    e("s_cselect_b32 s12, s42, s44"); e("s_cselect_b32 s13, s43, s45")
    e(f"s_mov_b32 s14, {P*D*2}"); e("s_mov_b32 s15, 0x00020000")
    e("s_cselect_b32 s16, s56, s58"); e("s_cselect_b32 s17, s57, s59")
    e(f"s_mov_b32 s18, {D*F*2}"); e("s_mov_b32 s19, 0x00020000")
    srd(top, 20, 66, 67, SZ_ACT, OFF_ACT)
    srd(top, 24, 66, 67, SZ_ST+SZ_CS+SZ_E, OFF_ST)
    e("s_cmp_lg_u32 s2, 0"); e("s_cbranch_scc1 K1_NONONCE")
    e("s_cmp_lg_u32 s3, 0"); e("s_cbranch_scc1 K1_NONONCE")
    e("s_memrealtime s[86:87]"); e("s_waitcnt lgkmcnt(0)"); e("s_or_b32 s86, s86, 1")
    e("v_mov_b32 v6, s86"); e("v_mov_b32 v7, 0"); e("s_mov_b64 exec, 1")
    e("global_store_dword v7, v6, s[64:65] sc0 sc1"); e("s_mov_b64 exec, -1")
    top.lab("K1_NONONCE")
    e("s_lshr_b32 s88, s6, 2"); e("s_and_b32 s89, s6, 3")
    e("s_cmp_eq_u32 s88, 0"); e("s_cbranch_scc1 K1_MINI0")
    e("s_cmp_eq_u32 s88, 2"); e("s_cbranch_scc1 K1_MINI2")
    e("s_cmp_eq_u32 s88, 1"); e("s_cselect_b32 s90, s80, s82")
    e(f"s_mul_i32 s91, s89, {128*3584}"); e("s_add_u32 s90, s90, s91")
    tmp = Em(); dma(tmp, 16, VT2, 90, 0, 75, MREG); dma(tmp, 16, VT2, 90, 64*3584, 75, MREG + 2*U); top.L += tmp.L
    e("s_branch K1_MINIDONE")
    top.lab("K1_MINI0")
    e("s_lshl_b32 s90, s89, 8")
    tmp = Em(); dma(tmp, 12, VSB, 90, 0, 75, MREG); dma(tmp, 12, VSB, 90, 128, 75, MREG + 2*U); top.L += tmp.L
    e("s_branch K1_MINIDONE")
    top.lab("K1_MINI2")
    e(f"s_mul_i32 s91, s89, {128*3584}"); e("s_add_u32 s90, s81, s91")
    tmp = Em()
    for i in range(3): dma(tmp, 16, VT3D+i, 90, 0, 77, MREG + i*1024)
    top.L += tmp.L
    top.lab("K1_MINIDONE")
    e("s_lshl_b32 s90, s7, 3"); e("s_add_u32 s90, s90, s3"); e("s_lshl_b32 s90, s90, 10"); e("s_add_u32 s90, s90, s78")
    VST = 8; VNON = 12
    top.vmem(f"buffer_load_dwordx4 {rng(VST,4)}, v{VLANE16}, s[8:11], s90 offen")
    e("v_mov_b32 v7, 0")
    top.vmem(f"global_load_dword v{VNON}, v7, s[64:65] sc1")
    sq_stage = {}
    sq_stage[0] = dma_stage(top, 0)
    e("s_lshl_b32 s90, s6, 4"); e("s_add_u32 s90, s90, s7")
    e("s_min_u32 s91, s3, 6"); e("s_mul_i32 s92, s90, 7"); e("s_add_u32 s92, s92, s91")
    e("s_mov_b32 s93, 38347923"); e("s_mul_hi_u32 s93, s92, s93")
    e("s_mul_i32 s94, s93, 112"); e("s_sub_u32 s94, s92, s94")
    srd(top, 28, 60, 61, F*D*2)
    e("v_and_b32 v2, 31, v0"); e("v_lshrrev_b32 v3, 5, v0")
    e("v_lshlrev_b32 v4, 12, v3"); e("v_lshl_add_u32 v4, v2, 1, v4")
    e("s_lshl_b32 s95, s94, 14"); e("s_lshl_b32 s74, s93, 6"); e("s_add_u32 s95, s95, s74")
    for j in range(8):
        ro = (8*(j>>2) + (j&3))*1024
        op = "buffer_load_ushort"
        if ro > 4095:
            e(f"s_add_u32 s74, s95, {ro & ~4095}")
            top.vmem(f"{op} v{48 + j}, v4, s[28:31], s74 offen offset:{ro & 4095}")
        else:
            top.vmem(f"{op} v{48 + j}, v4, s[28:31], s95 offen offset:{ro}")
    e(f"s_mul_i32 s92, s93, {NKS}"); e("s_add_u32 s92, s92, s94"); e("s_add_u32 s92, s92, 64"); e("s_lshl_b32 s92, s92, 10")
    e("s_lshl_b32 s93, s90, 2"); e("s_add_u32 s93, s93, s4")
    e("s_lshr_b32 s94, s93, 6"); e("s_and_b32 s95, s93, 63")
    e("v_lshlrev_b32 v4, 10, v2"); e("v_lshl_add_u32 v4, v3, 3, v4")
    e("s_lshl_b32 s74, s94, 15"); e("s_lshl_b32 s83, s95, 4"); e("s_add_u32 s74, s74, s83")
    e("s_mov_b32 s28, s46"); e("s_mov_b32 s29, s47"); e(f"s_mov_b32 s30, {D*P*2}")
    top.vmem(f"buffer_load_dwordx2 v[56:57], v4, s[28:31], s74 offen")
    e("s_mov_b32 s28, s48"); e("s_mov_b32 s29, s49")
    sq_side = top.vmem(f"buffer_load_dwordx2 v[58:59], v4, s[28:31], s74 offen")
    e(f"s_mul_i32 s93, s94, {NKS}"); e("s_add_u32 s93, s93, s95"); e("s_lshl_b32 s93, s93, 10")
    for kb in range(1, 4): sq_stage[kb] = dma_stage(top, kb)
    e("s_mov_b32 s28, s38"); e("s_mov_b32 s29, s39"); e(f"s_mov_b32 s30, {P*2}")
    e("v_and_b32 v6, 31, v0"); e("s_lshl_b32 s90, s7, 6"); e("v_lshl_add_u32 v6, v6, 1, s90")
    top.vmem(f"buffer_load_ushort v{VLRE}, v6, s[28:31], 0 offen")
    e("s_mov_b32 s28, s40"); e("s_mov_b32 s29, s41")
    top.vmem(f"buffer_load_ushort v{VLIM}, v6, s[28:31], 0 offen")
    e("s_mov_b32 s28, s50"); e("s_mov_b32 s29, s51")
    sq_lam = top.vmem(f"buffer_load_ushort v{VLDT}, v6, s[28:31], 0 offen")
    e("v_and_b32 v2, 31, v0"); e("v_lshrrev_b32 v3, 5, v0")
    e("v_bfe_u32 v4, v2, 2, 1"); e("v_lshlrev_b32 v4, 4, v4")
    e("v_lshrrev_b32 v5, 3, v2"); e("v_lshl_add_u32 v4, v5, 2, v4")
    e("v_and_b32 v5, 3, v2"); e(f"v_add_u32 v{VPI}, v4, v5")
    e(f"v_bfe_u32 v5, v{VPI}, 1, 3"); e("v_xor_b32 v5, v3, v5")
    e(f"v_lshlrev_b32 v6, 7, v{VPI}"); e("v_lshl_add_u32 v6, v5, 4, v6")
    e("s_lshl_b32 s90, s4, 12"); e("v_add_u32 v6, s90, v6")
    for s4 in range(4): e(f"v_xor_b32 v{VXR+s4}, {32*s4}, v6")
    e("v_bfe_u32 v2, v0, 4, 1"); e("v_lshrrev_b32 v3, 5, v0"); e("v_bfe_u32 v4, v0, 2, 2"); e("v_and_b32 v5, 3, v0")
    e("v_lshl_add_u32 v6, v3, 3, v4")
    e("v_lshlrev_b32 v7, 6, v6"); e("v_lshl_add_u32 v7, v5, 3, v7"); e("v_lshl_add_u32 v7, v2, 12, v7")
    e(f"v_lshl_add_u32 v{VT2A}, v2, 5, v7"); e(f"v_xor_b32 v{VT2B}, 32, v{VT2A}")
    e("v_mul_u32_u24 v7, 96, v6"); e("v_lshl_add_u32 v7, v5, 3, v7")
    e(f"v_mul_u32_u24 v6, {12288+384}, v2"); e(f"v_add_u32 v{VT3R}, v6, v7")
    e("v_cmp_lt_u32 vcc, 47, v0"); e("v_mov_b32 v6, 12288"); e("s_nop 0"); e("v_cndmask_b32 v6, 0, v6, vcc")
    e(f"v_sub_u32 v{VT3W}, v{VT3R}, v6")
    e("v_and_b32 v2, 31, v0"); e("v_lshrrev_b32 v3, 5, v0")
    e("v_bfe_u32 v5, v2, 1, 3"); e("v_xor_b32 v5, v3, v5")
    e("v_lshlrev_b32 v6, 7, v2"); e("v_lshl_add_u32 v6, v5, 4, v6")
    for s4 in range(4): e(f"v_xor_b32 v{VBR+s4}, {32*s4}, v6")
    top.wait_vm(1)
    e("s_mov_b32 s90, 0x3f803f80")
    e("v_mov_b32 v2, 0"); e("v_mov_b32 v3, 0")
    for i in range(4):
        e(f"v_dot2_f32_bf16 v2, v{VST+i}, s90, v2")
        e(f"v_dot2_f32_bf16 v3, v{VST+i}, v{VST+i}, v3")
    e("s_nop 2")
    for dpp in ("row_shr:1", "row_shr:2", "row_shr:4", "row_shr:8", "row_bcast:15 row_mask:0xa", "row_bcast:31 row_mask:0xc"):
        rm = "" if "row_mask" in dpp else " row_mask:0xf"
        e(f"v_add_f32_dpp v2, v2, v2 {dpp}{rm} bank_mask:0xf")
        e(f"v_add_f32_dpp v3, v3, v3 {dpp}{rm} bank_mask:0xf")
        e("s_nop 1")
    e("v_mul_f32 v2, 0x3b000000, v2")
    e("v_mul_f32 v3, 0x3b000000, v3")
    e("v_fma_f32 v3, -v2, v2, v3")
    e("v_max_f32 v3, 0, v3")
    e("v_cvt_pk_bf16_f32 v4, v2, v3")
    e("v_and_b32 v5, 0xffff0000, v4")
    e("v_add_f32 v5, 0x3727c5ac, v5")
    e("v_cvt_pk_bf16_f32 v5, v5, v5")
    e("v_lshlrev_b32 v5, 16, v5")
    e("v_sqrt_f32 v5, v5")
    e("s_nop 0")
    e("v_cvt_pk_bf16_f32 v5, v2, v5")
    e("v_mov_b32 v8, v5")
    e("s_cmp_lg_u32 s3, 7"); e("s_cbranch_scc1 K1_NN2")
    top.lab("K1_NLOOP")
    e(f"v_readfirstlane_b32 s{STAG}, v{VNON}")
    e(f"s_cmp_lg_u32 s{STAG}, 0"); e("s_cbranch_scc1 K1_NGOT")
    e("v_mov_b32 v7, 0")
    e(f"global_load_dword v{VNON}, v7, s[64:65] sc1"); e("s_waitcnt vmcnt(0)")
    e("s_add_u32 s32, s32, 1"); e(f"s_cmp_lt_u32 s32, {SPIN_MAX}"); e("s_cbranch_scc1 K1_NLOOP")
    top.lab("K1_NGOT")
    e(f"v_mov_b32 v7, {L_NONCE}"); e(f"ds_write_b32 v7, v{VNON}"); e("s_waitcnt lgkmcnt(0)")
    top.lab("K1_NN2")
    top.wait_vm(sq_stage[0])
    e("s_barrier")
    e(f"v_mov_b32 v7, {L_NONCE}"); e("ds_read_b32 v6, v7"); e("s_waitcnt lgkmcnt(0)")
    e(f"v_readfirstlane_b32 s{STAG}, v6")
    e("s_lshl_b32 s90, s6, 7"); e("s_lshl_b32 s91, s7, 3"); e("s_add_u32 s90, s90, s91"); e("s_add_u32 s90, s90, s3"); e("s_lshl_b32 s90, s90, 3")
    e(f"v_mov_b32 v9, s{STAG}"); e("v_mov_b32 v7, 0")
    e("s_mov_b32 exec_lo, 0"); e("s_brev_b32 exec_hi, 1")
    top.vmem(f"buffer_store_dwordx2 v[8:9], v7, s[24:27], s90 offen offset:{O_ST} sc0 sc1")
    e("s_mov_b64 exec, -1")
    e("s_cmp_eq_u32 s88, 2"); e("s_cselect_b32 s90, 3, 2")
    e("s_cmp_ge_u32 s3, s90"); e("s_cbranch_scc1 K1_MCDONE")
    for i in range(4): e(f"v_mov_b32 v{44+i}, 0x3f803f80")
    e("s_cmp_eq_u32 s88, 0"); e("s_cbranch_scc1 K1_MC0")
    e("s_cmp_eq_u32 s88, 2"); e("s_cbranch_scc1 K1_MC2")
    e("s_lshl_b32 s90, s3, 5"); e(f"v_xor_b32 v6, s90, v{VT2A}"); e(f"v_add_u32 v6, {MREG}, v6")
    for ks in range(8):
        o = (ks//4)*2*U + (ks%4)*1024
        e(f"ds_read_b64_tr_b16 v[{128+4*ks}:{129+4*ks}], v6 offset:{o}")
        e(f"ds_read_b64_tr_b16 v[{130+4*ks}:{131+4*ks}], v6 offset:{o+256}")
    e("s_branch K1_MCM")
    top.lab("K1_MC0")
    e("s_lshl_b32 s90, s3, 12"); e(f"s_add_u32 s90, s90, {MREG}")
    for ks in range(8):
        e(f"v_add_u32 v6, s90, v{VBR + ks%4}")
        e(f"ds_read_b128 v[{128+4*ks}:{131+4*ks}], v6 offset:{(ks//4)*2*U}")
    e("s_branch K1_MCM")
    top.lab("K1_MC2")
    e("s_lshl_b32 s90, s3, 5"); e(f"s_add_u32 s90, s90, {MREG}")
    e(f"v_add_u32 v6, s90, v{VT3R}"); e(f"v_add_u32 v7, s90, v{VT3W}")
    for ks in range(8):
        e(f"ds_read_b64_tr_b16 v[{128+4*ks}:{129+4*ks}], v6 offset:{ks*1536}")
        e(f"ds_read_b64_tr_b16 v[{130+4*ks}:{131+4*ks}], v{7 if ks==7 else 6} offset:{ks*1536+384}")
    top.lab("K1_MCM")
    e("s_waitcnt lgkmcnt(0)")
    for ks in range(8):
        c = "0" if ks == 0 else "v[64:79]"
        e(f"v_mfma_f32_32x32x16_bf16 v[64:79], v[44:47], v[{128+4*ks}:{131+4*ks}], {c}")
    e("s_nop 15"); e("s_nop 3")
    e("s_cmp_eq_u32 s88, 3"); e("s_cselect_b32 s90, 7, 0")
    e("s_cmp_eq_u32 s88, 2"); e("s_cselect_b32 s90, 4, s90")
    e("s_cmp_eq_u32 s88, 1"); e("s_cselect_b32 s90, 2, s90")
    e("s_add_u32 s90, s90, s3")
    e("s_mul_i32 s91, s7, 9"); e("s_add_u32 s90, s90, s91"); e("s_lshl_b32 s90, s90, 10")
    e("s_lshr_b32 s91, s89, 1"); e("s_lshl_b32 s91, s91, 9"); e("s_add_u32 s90, s90, s91")
    e("s_and_b32 s91, s89, 1"); e("s_lshl_b32 s91, s91, 3"); e("s_add_u32 s90, s90, s91")
    e("v_lshlrev_b32 v6, 4, v0")
    e("v_mov_b32 v4, v64"); e(f"v_mov_b32 v5, s{STAG}")
    e("s_mov_b32 exec_hi, 0")
    e(f"s_add_u32 s90, s90, {O_CS}")
    e("buffer_store_dwordx2 v[4:5], v6, s[24:27], s90 offen sc0 sc1")
    e("s_mov_b64 exec, -1")
    top.lab("K1_MCDONE")
    top.wait_vm(sq_side)
    srd(top, 28, 66, 67, SZ_WT, OFF_WT)
    for j in range(4): e(f"v_lshl_or_b32 v{48+j}, v{49+2*j}, 16, v{48+2*j}")
    top.vmem(f"buffer_store_dwordx4 v[48:51], v{VLANE16}, s[28:31], s92 offen")
    e("s_mov_b32 s90, 0x05040100"); e("s_mov_b32 s91, 0x07060302")
    e("v_perm_b32 v2, v58, v56, s90"); e("v_perm_b32 v3, v58, v56, s91")
    e("v_perm_b32 v4, v59, v57, s90"); e("v_perm_b32 v5, v59, v57, s91")
    top.vmem(f"buffer_store_dwordx4 v[2:5], v{VLANE16}, s[28:31], s93 offen")
    e("s_cmp_lg_u32 s5, 0"); e("s_cbranch_scc1 K1_CH1")

    texts = [top.text()]
    for ch in range(2):
        texts.append(gen_ch(ch, top, sq_stage, sq_lam))
    tail = Em()
    tail.lab("K1_FIN")
    if DIAG:
        e = tail.e
        e("s_waitcnt vmcnt(0)")
        e("s_memrealtime s[86:87]"); e("s_memtime s[88:89]"); e("s_waitcnt lgkmcnt(0)")
        e("s_cmp_lg_u32 s3, 0"); e("s_cbranch_scc1 K1_END")
        e("v_mov_b32 v20, s96"); e("v_mov_b32 v21, s86"); e("s_sub_u32 s88, s88, s98"); e("v_mov_b32 v22, s88"); e("v_mov_b32 v23, 0")
        e("s_lshl_b32 s50, s2, 5"); e(f"s_add_u32 s50, s50, {OFF_TS}"); e("v_mov_b32 v24, s50")
        e("s_mov_b64 exec, 1")
        e("global_store_dwordx4 v24, v[20:23], s[66:67]")
    tail.lab("K1_END")
    tail.e("s_endpgm")
    return "".join(texts) + tail.text() + "\n".join(slow_paths) + "\n", kd(name, 256), LDS_TOTAL


LOG2E = "0x3fb8aa3b"; NLOG2E = "0xbfb8aa3b"; INV2PI = "0x3e22f983"
NF = {0: int(os.environ.get("NF0", "12")), 1: int(os.environ.get("NF1", "7"))}

def gen_ch(ch, top, sq_stage_in, sq_lam):
    em = Em(); em.vm = top.vm; em.vm_done = top.vm_done; e = em.e
    st = Stream(em)
    sq_stage = dict(sq_stage_in); sq_w1 = {}; sq_w2 = {}
    C = f"C{ch}"
    em.lab(f"K1_CH{ch}")
    base_now = {}
    def set_base(regs, key, base):
        hi = base & ~0x7fff; cur = base_now.get(key, 0)
        if hi != cur:
            for r in regs:
                d = hi - cur
                em.e(f"v_add_u32 v{r}, {d}, v{r}" if d > 0 else f"v_subrev_u32 v{r}, {-d}, v{r}")
            base_now[key] = hi
        return base - hi
    def x_read(kb, s4):
        imm = set_base(range(VXR, VXR+4), "x", X_base(kb))
        return em.lds(f"ds_read_b128 {rng(xf(4*kb+s4),4)}, v{VXR+s4} offset:{imm}")
    def ssm_read(dst, kb, s4, im):
        imm = set_base(range(VBR, VBR+4), "b", S0_base(kb))
        return em.lds(f"ds_read_b128 {rng(dst,4)}, v{VBR+s4} offset:{imm + 4096*im}")
    def t2_read(dst, base, s, j):
        imm = set_base((VT2A, VT2B), "t2", base)
        r = VT2A if j == 0 else VT2B
        em.lds(f"ds_read_b64_tr_b16 {rng(dst,2)}, v{r} offset:{imm + s*1024}")
        return em.lds(f"ds_read_b64_tr_b16 {rng(dst+2,2)}, v{r} offset:{imm + s*1024 + 256}")
    def t3_read(dst, base, s, j):
        imm = set_base((VT3R, VT3W), "t3", base)
        em.lds(f"ds_read_b64_tr_b16 {rng(dst,2)}, v{VT3R} offset:{imm + s*1536 + j*32}")
        r = VT3W if s == 7 else VT3R
        return em.lds(f"ds_read_b64_tr_b16 {rng(dst+2,2)}, v{r} offset:{imm + s*1536 + 384 + j*32}")
    units = []
    for ks in range(32):
        kb, s4 = ks // 4, ks % 4
        bar = f"B{kb}" if (s4 == 0 and kb > 0) else None
        for j in range(2):
            if ch == 0: rd = (lambda d, kb=kb, s4=s4, j=j: ssm_read(d, kb, s4, j)); ori = "xa"
            else: rd = (lambda d, kb=kb, s4=s4, j=j: t2_read(d, A0_base(kb), s4, j)); ori = "wa"
            units.append(dict(p=0, ks=ks, acc=64+16*j, ori=ori, rd=rd, xr=((kb, s4) if j == 0 else None), bar=(bar if j == 0 else None)))
    for ks in range(32):
        u, s = ks // 8, ks % 8
        bar = {0: "B8", 8: "B8a", 16: "B8m"}.get(ks)
        for n_, j in enumerate([0] if ch == 0 else [1, 2]):
            units.append(dict(p=1, ks=ks, acc=96+16*n_, ori="wa", rd=(lambda d, u=u, s=s, j=j: t3_read(d, W1_base[u], s, j)), xr=None, bar=(bar if n_ == 0 else None)))
    for ks in range(32):
        kb, s4 = ks // 4, ks % 4
        units.append(dict(p=2, ks=ks, acc=(112 if ch == 0 else 64), ori="wa", rd=(lambda d, kb=kb, s4=s4: t2_read(d, W2_base[kb], s4, ch)), xr=None, bar=("B9" if ks == 0 else None)))
    def barrier(name):
        if name == "B8a" and ch == 0: st.flush_until("seg_written")
        if name[1:].isdigit() and 1 <= int(name[1:]) <= 7: em.wait_vm(sq_stage[int(name[1:])])
        if name == "B8": em.wait_vm(sq_w1[0])
        if name == "B8a": em.wait_vm(sq_w1[1])
        if name == "B8m": em.wait_vm(sq_w1[3])
        if name == "B9": em.wait_vm(sq_w2[7])
        e("s_waitcnt lgkmcnt(0)"); em.lg_done = em.lg
        e("s_barrier")
        st.signal(name)
        if name == "B1": sq_stage[4] = dma_stage(em, 4); sq_w1[0] = dma_T3(em, 0)
        if name == "B2": sq_stage[5] = dma_stage(em, 5)
        if name == "B3": sq_stage[6] = dma_stage(em, 6)
        if name == "B4": sq_stage[7] = dma_stage(em, 7)
        if name in ("B5", "B6", "B7"):
            i = int(name[1:]) - 4
            sq_w1[i] = dma_T3(em, i); sq_w2[i-1] = dma_T2(em, i-1, W2_base[i-1], 82)
        if name == "B8":
            for i in range(3, 7): sq_w2[i] = dma_T2(em, i, W2_base[i], 82)
        if name == "B8m": sq_w2[7] = dma_T2(em, 7, W2_base[7], 82)
    e("s_lshl_b32 s68, s6, 2"); e("s_add_u32 s68, s68, s4"); e(f"s_mul_i32 s68, s68, {NKS*1024}")
    e("s_mul_i32 s69, s7, 9"); e("s_lshl_b32 s69, s69, 10"); e(f"s_add_u32 s69, s69, {O_CS}")
    e("s_lshl_b32 s71, s6, 7"); e("s_lshl_b32 s90, s4, 5"); e("s_add_u32 s71, s71, s90"); e("s_lshl_b32 s71, s71, 3")
    holder = {}
    def issue_stats(dst):
        def f(em_):
            holder["st"] = tagged_load(em_, [f"v_lshlrev_b32 v{dst}, 3, v{VPI}"],
                [f"buffer_load_dwordx2 {rng(dst,2)}, v{dst}, s[24:27], s71 offen offset:{O_ST} sc1"], [dst+1], f"K1{C}_ST")
        return [f]
    def proc_stats(src):
        return [lambda em_: holder["st"](em_),
                f"v_and_b32 v{VRS}, 0xffff0000, v{src}",
                f"v_rcp_f32 v{VRS}, v{VRS}",
                f"v_and_b32 v{VXM+1}, 0xffff, v{src}",
                f"v_xor_b32 v{VXM+1}, 0x8000, v{VXM+1}",
                f"v_cmp_gt_u32 vcc, 32, v0",
                f"v_lshl_or_b32 v{VXM}, v{VXM+1}, 16, v{VXM+1}",
                f"v_mov_b32 v{VXM+2}, 0",
                f"v_cndmask_b32 v{VXM}, 0, v{VXM}, vcc",
                f"v_cndmask_b32 v{VXM+1}, 0, v{VXM+1}, vcc",
                f"v_mov_b32 v{VXM+3}, 0"]
    def issue_cs(tile, gc):
        def f(em_):
            holder[("cs", tile)] = tagged_load(em_, [f"s_add_u32 s90, s69, {tile*1024}"],
                [f"buffer_load_dwordx4 {rng(gc,4)}, v{VLANE16}, s[24:27], s90 offen sc1"], [gc+1, gc+3], f"K1{C}_CS{tile}")
        return [f]
    def corr(tile, gc, acc, ori, fr):
        a, b = fr+2, fr+3
        seq = [lambda em_: holder[("cs", tile)](em_),
               f"v_add_f32 v{a}, v{gc}, v{gc+2}",
               f"v_mov_b32 v{b}, v{a}",
               "s_nop 1",
               f"v_permlane32_swap_b32 v{a}, v{b}",
               "s_nop 1",
               f"v_add_f32 v{a}, v{a}, v{b}",
               f"v_cvt_pk_bf16_f32 v{b}, v{a}, v{a}",
               f"v_lshlrev_b32 v{b}, 16, v{b}",
               f"v_sub_f32 v{b}, v{a}, v{b}",
               f"v_cvt_pk_bf16_f32 v{fr}, v{a}, v{b}",
               f"v_and_b32 v{a}, 0xffff0000, v{fr}",
               f"v_sub_f32 v{b}, v{b}, v{a}",
               f"v_mov_b32 v{a}, 0",
               f"v_cvt_pk_bf16_f32 v{fr+1}, v{b}, v{a}",
               f"v_mov_b32 v{b}, 0",
               "s_nop 1"]
        if ori == "wa": seq.append(f"v_mfma_f32_32x32x16_bf16 {rng(acc,16)}, {rng(fr,4)}, {rng(VXM,4)}, {rng(acc,16)}")
        else: seq.append(f"v_mfma_f32_32x32x16_bf16 {rng(acc,16)}, {rng(VXM,4)}, {rng(fr,4)}, {rng(acc,16)}")
        return seq
    def ffn_epi(acc, sreg, j):
        T = 6; seq = ["s_nop 7", "s_nop 3"]
        for i in range(4):
            g0, g1, u0, u1 = acc+2*i, acc+2*i+1, acc+8+2*i, acc+8+2*i+1
            seq += [f"v_mul_f32 v{T}, v{g0}, v{VRS}", f"v_mul_f32 v{T+1}, v{g1}, v{VRS}",
                    f"v_mul_f32 v{T+2}, v{u0}, v{VRS}", f"v_mul_f32 v{T+3}, v{u1}, v{VRS}",
                    f"v_cvt_pk_bf16_f32 v{T}, v{T}, v{T+1}", f"v_cvt_pk_bf16_f32 v{T+2}, v{T+2}, v{T+3}",
                    f"v_lshlrev_b32 v{T+1}, 16, v{T}", f"v_and_b32 v{T}, 0xffff0000, v{T}",
                    f"v_mul_f32 v{T+4}, {NLOG2E}, v{T+1}", f"v_mul_f32 v{T+5}, {NLOG2E}, v{T}",
                    f"v_exp_f32 v{T+4}, v{T+4}", f"v_exp_f32 v{T+5}, v{T+5}",
                    f"v_lshlrev_b32 v{T+3}, 16, v{T+2}",
                    f"v_add_f32 v{T+4}, 1.0, v{T+4}", f"v_add_f32 v{T+5}, 1.0, v{T+5}",
                    f"v_rcp_f32 v{T+4}, v{T+4}", f"v_rcp_f32 v{T+5}, v{T+5}",
                    f"v_and_b32 v{T+2}, 0xffff0000, v{T+2}",
                    f"v_mul_f32 v{T+4}, v{T+1}, v{T+4}", f"v_mul_f32 v{T+5}, v{T}, v{T+5}",
                    f"v_cvt_pk_bf16_f32 v{T+4}, v{T+4}, v{T+5}",
                    f"v_lshlrev_b32 v{T+5}, 16, v{T+4}", f"v_and_b32 v{T+4}, 0xffff0000, v{T+4}",
                    f"v_mul_f32 v{T+5}, v{T+5}, v{T+3}", f"v_mul_f32 v{T+4}, v{T+4}, v{T+2}",
                    f"v_cvt_pk_bf16_f32 v{2+i}, v{T+5}, v{T+4}"]
        seq += [f"s_lshl_b32 s90, s{sreg}, 5", f"s_add_u32 s90, s90, s68", f"s_add_u32 s90, s90, {(64+j)*1024}",
                lambda em_: em_.vmem(f"buffer_store_dwordx4 v[2:5], v{VLANE16}, s[20:23], s90 offen"),
                "s_nop 1"]
        return seq
    if ch == 1:
        G0, G1 = 32, 12
        st.add([("after", "B6")] + issue_stats(10) + issue_cs(2, G0) + issue_cs(3, G1))
        st.add([("after", "p0done")] + proc_stats(10))
        st.add(corr(2, G0, 64, "wa", 2) + issue_cs(5, G0) + ffn_epi(64, 80, 0) + [("mark", "acc64_free")])
        st.add(corr(3, G1, 80, "wa", 2) + issue_cs(6, G1) + ffn_epi(80, 80, 1))
        st.add([("after", "p1done")])
        st.add(corr(5, G0, 96, "wa", 2) + issue_cs(8, G0) + ffn_epi(96, 81, 1))
        st.add(corr(6, G1, 112, "wa", 2) + ffn_epi(112, 81, 2))
        st.add([("after", "p2done")])
        st.add(corr(8, G0, 64, "wa", 2) + ffn_epi(64, 82, 1))
    else:
        LAM, L16, L128, CO2, CC, PW, EE, HH = 52, 54, 56, 58, 60, 62, 32, 34
        RE, IM = 64, 80
        st.add([("after", "B6")] + issue_stats(120) + issue_cs(0, 112) + issue_cs(1, 116))
        st.add([("after", "p0done")])
        def csq(dst, src, t):
            return [f"v_mul_f32 v{t}, v{src}, v{src}", f"v_mul_f32 v{t+1}, v{src}, v{src+1}",
                    f"v_fma_f32 v{dst}, -v{src+1}, v{src+1}, v{t}", f"v_add_f32 v{dst+1}, v{t+1}, v{t+1}"]
        lam = [lambda em_: em_.wait_vm(sq_lam),
               f"v_lshlrev_b32 v2, 16, v{VLRE}", f"v_lshlrev_b32 v3, 16, v{VLIM}", f"v_lshlrev_b32 v4, 16, v{VLDT}",
               f"v_mul_f32 v4, {LOG2E}, v4", "v_exp_f32 v4, v4", "s_nop 0",
               "v_cvt_pk_bf16_f32 v4, v4, v4", "v_lshlrev_b32 v4, 16, v4",
               "v_mul_f32 v5, v4, v2", "v_mul_f32 v6, v4, v3",
               f"v_mul_f32 v5, {LOG2E}, v5", f"v_mul_f32 v6, {INV2PI}, v6",
               "v_exp_f32 v5, v5", "v_fract_f32 v6, v6", "s_nop 0",
               "v_cos_f32 v7, v6", "v_sin_f32 v8, v6", "s_nop 0",
               f"v_mul_f32 v{LAM}, v5, v7", f"v_mul_f32 v{LAM+1}, v5, v8",
               f"v_subrev_f32 v7, 1.0, v{LAM}",
               "v_mul_f32 v9, v2, v2", "v_fma_f32 v9, v3, v3, v9", "v_rcp_f32 v9, v9",
               "v_mul_f32 v10, v7, v2", f"v_fma_f32 v10, v{LAM+1}, v3, v10",
               f"v_mul_f32 v11, v{LAM+1}, v2", "v_fma_f32 v11, -v7, v3, v11",
               "v_add_f32 v9, v9, v9",
               f"v_mul_f32 v{CO2}, v10, v9", f"v_mul_f32 v{CO2+1}, v11, v9"]
        lam += csq(L16, LAM, 2) + csq(L16, L16, 2) + csq(L16, L16, 2) + csq(L16, L16, 2)
        lam += csq(L128, L16, 2) + csq(L128, L128, 2) + csq(L128, L128, 2)
        st.add(lam)
        st.add(proc_stats(120))
        st.add(corr(0, 112, RE, "xa", 2) + corr(1, 116, IM, "xa", 6))
        st.add(issue_cs(4, 12))
        st.add([f"s_lshl_b32 s90, s4, 7", f"v_lshlrev_b32 v2, 2, v{VPI}", f"v_add_u32 v2, s90, v2", f"v_add_u32 v2, {L_RS}, v2",
                lambda em_: em_.lds(f"ds_write_b32 v2, v{VRS}"),
                "v_lshrrev_b32 v3, 5, v0", "v_lshlrev_b32 v3, 6, v3", f"v_add_u32 v3, s90, v3", f"v_add_u32 v3, {L_RS}, v3",
                lambda em_: em_.e("s_waitcnt lgkmcnt(0)") or setattr(em_, "lg_done", em_.lg)])
        def rd_rs(em_):
            for q in range(4): holder["rs"] = em_.lds(f"ds_read_b128 {rng(112+4*q,4)}, v3 offset:{16*q}")
        st.add([rd_rs, lambda em_: em_.wait_lg(holder["rs"]), "s_nop 7"])
        for r in range(16):
            st.add([f"v_mul_f32 v{RE+r}, v{RE+r}, v{112+r}", f"v_mul_f32 v{IM+r}, v{IM+r}, v{112+r}"])
        st.add([f"v_mov_b32 v2, v{RE}", f"v_mov_b32 v3, v{IM}"])
        cur = 2
        for r in range(1, 16):
            nx = 6 - cur
            st.add([f"v_fma_f32 v{nx}, v{LAM}, v{cur}, v{RE+r}", f"v_fma_f32 v{nx+1}, v{LAM}, v{cur+1}, v{IM+r}",
                    f"v_fma_f32 v{nx}, -v{LAM+1}, v{cur+1}, v{nx}", f"v_fma_f32 v{nx+1}, v{LAM+1}, v{cur}, v{nx+1}"])
            cur = nx
        st.add([f"s_lshl_b32 s90, s4, 9", f"s_add_u32 s90, s90, {L_SEG}", "v_lshlrev_b32 v6, 3, v0", "v_add_u32 v6, s90, v6",
                lambda em_, cur=cur: em_.lds(f"ds_write_b64 v6, {rng(cur,2)}"),
                ("mark", "seg_written"), ("after", "B8a")])
        def rd_seg(em_):
            for s_ in range(8): holder["seg"] = em_.lds(f"ds_read_b64 {rng(112+2*s_,2)}, v6 offset:{256*s_}")
        st.add(["v_and_b32 v6, 31, v0", "v_lshlrev_b32 v6, 3, v6", f"v_add_u32 v6, {L_SEG}, v6", rd_seg,
                "v_lshrrev_b32 v7, 5, v0", "s_lshl_b32 s90, s4, 1", "v_add_u32 v7, s90, v7",
                f"v_mov_b32 v{EE}, 0", f"v_mov_b32 v{EE+1}, 0", "v_mov_b32 v8, 1.0", "v_mov_b32 v9, 0",
                f"v_mov_b32 v{CC}, 0", f"v_mov_b32 v{CC+1}, 0", f"v_mov_b32 v{PW}, 1.0", f"v_mov_b32 v{PW+1}, 0",
                lambda em_: em_.wait_lg(holder["seg"])])
        for s_ in range(8):
            if s_ > 0:
                st.add([f"v_cmp_eq_u32 vcc, {s_}, v7", "s_nop 1",
                        f"v_cndmask_b32 v{CC}, v{CC}, v{EE}, vcc", f"v_cndmask_b32 v{CC+1}, v{CC+1}, v{EE+1}, vcc",
                        f"v_cndmask_b32 v{PW}, v{PW}, v8, vcc", f"v_cndmask_b32 v{PW+1}, v{PW+1}, v9, vcc"])
            st.add([f"v_fma_f32 v2, v{L16}, v{EE}, v{112+2*s_}", f"v_fma_f32 v3, v{L16}, v{EE+1}, v{113+2*s_}",
                    f"v_fma_f32 v2, -v{L16+1}, v{EE+1}, v2", f"v_fma_f32 v3, v{L16+1}, v{EE}, v3",
                    f"v_mov_b32 v{EE}, v2", f"v_mov_b32 v{EE+1}, v3"])
            if s_ < 7:
                st.add([f"v_mul_f32 v2, v{L16}, v8", f"v_mul_f32 v3, v{L16}, v9",
                        f"v_fma_f32 v2, -v{L16+1}, v9, v2", f"v_fma_f32 v3, v{L16+1}, v8, v3",
                        "v_mov_b32 v8, v2", "v_mov_b32 v9, v3"])
        st.add([f"v_mov_b32 v2, v{EE}", f"v_mov_b32 v3, s{STAG}", f"v_mov_b32 v4, v{EE+1}", f"v_mov_b32 v5, s{STAG}",
                "s_lshl_b32 s90, s7, 4", "s_add_u32 s90, s90, s6", "s_lshl_b32 s90, s90, 9", f"s_add_u32 s90, s90, {O_E}",
                ["s_cmp_eq_u32 s4, 0", "s_cselect_b32 exec_lo, -1, 0", "s_mov_b32 exec_hi, 0",
                 f"s_cbranch_execz K1{C}_NOPUB",
                 f"buffer_store_dwordx4 v[2:5], v{VLANE16}, s[24:27], s90 offen sc0 sc1",
                 lambda em_: em_.lab(f"K1{C}_NOPUB"),
                 "s_mov_b64 exec, -1", "s_nop 1"],
                ("mark", "segregs_free")])
        st.add([("after", "p1done")])
        st.add(corr(4, 12, 96, "wa", 2) + issue_cs(7, 12) + ffn_epi(96, 81, 0))
        st.add([("after", "p2s9")])
        def issue_E(em_):
            holder["E"] = tagged_load(em_, ["s_lshl_b32 s90, s7, 13", f"s_add_u32 s90, s90, {O_E}",
                                            "v_lshrrev_b32 v2, 5, v0", "v_lshlrev_b32 v2, 9, v2", "v_and_b32 v3, 31, v0", "v_lshl_add_u32 v2, v3, 4, v2"],
                 [f"buffer_load_dwordx4 {rng(XF+4*i,4)}, v2, s[24:27], s90 offen offset:{1024*i} sc1" if i < 4 else
                  f"buffer_load_dwordx4 {rng(XF+4*i,4)}, v2, s[24:27], s94 offen offset:{1024*(i-4)} sc1" for i in range(8)],
                 [XF+4*i+k for i in range(8) for k in (1, 3)], f"K1{C}_E",
                 maskpre=lambda n: [f"v_lshrrev_b32 v3, 5, v0", f"v_add_u32 v3, {2*(n//2)}, v3", f"v_cmp_gt_u32 s[92:93], s6, v3", "s_nop 1"])
        st.add(["s_lshl_b32 s94, s7, 13", f"s_add_u32 s94, s94, {O_E+4096}", issue_E])
        st.add([("after", "p2s24")])
        st.add([lambda em_: holder["E"](em_), f"v_mov_b32 v{HH}, 0", f"v_mov_b32 v{HH+1}, 0"])
        for i in range(8):
            R = XF + 4*i
            st.add([f"v_mov_b32 v{R+1}, v{R}", f"v_mov_b32 v{R+3}, v{R+2}", "s_nop 1",
                    f"v_permlane32_swap_b32 v{R}, v{R+1}", f"v_permlane32_swap_b32 v{R+2}, v{R+3}", "s_nop 1"])
            for o in range(2):
                st.add([f"v_fma_f32 v2, v{L128}, v{HH}, v{R+o}", f"v_fma_f32 v3, v{L128}, v{HH+1}, v{R+2+o}",
                        f"v_fma_f32 v2, -v{L128+1}, v{HH+1}, v2", f"v_fma_f32 v3, v{L128+1}, v{HH}, v3",
                        [f"s_cmp_gt_u32 s6, {2*i+o}", "s_cselect_b64 s[92:93], -1, 0"],
                        f"v_cndmask_b32 v{HH}, v{HH}, v2, s[92:93]", f"v_cndmask_b32 v{HH+1}, v{HH+1}, v3, s[92:93]"])
        st.add([f"v_fma_f32 v{CC}, v{PW}, v{HH}, v{CC}", f"v_fma_f32 v{CC+1}, v{PW}, v{HH+1}, v{CC+1}",
                f"v_fma_f32 v{CC}, -v{PW+1}, v{HH+1}, v{CC}", f"v_fma_f32 v{CC+1}, v{PW+1}, v{HH}, v{CC+1}"])
        st.add([f"s_mul_i32 s90, s4, 4608", f"s_add_u32 s90, s90, {HT_base}", "v_lshrrev_b32 v6, 5, v0", "v_mul_u32_u24 v6, 2304, v6",
                "v_and_b32 v7, 31, v0", "v_lshl_add_u32 v6, v7, 2, v6", "v_add_u32 v6, s90, v6"])
        cur = CC
        for r in range(16):
            nx = 2 if cur != 2 else 4
            st.add([f"v_fma_f32 v{nx}, v{LAM}, v{cur}, v{RE+r}", f"v_fma_f32 v{nx+1}, v{LAM}, v{cur+1}, v{IM+r}",
                    f"v_fma_f32 v{nx}, -v{LAM+1}, v{cur+1}, v{nx}", f"v_fma_f32 v{nx+1}, v{LAM+1}, v{cur}, v{nx+1}",
                    f"v_mul_f32 v8, v{CO2}, v{nx}", f"v_mul_f32 v9, -v{CO2}, v{nx+1}" if False else f"v_mul_f32 v9, v{CO2}, v{nx+1}",
                    f"v_fma_f32 v8, -v{CO2+1}, v{nx+1}, v8",
                    f"v_fma_f32 v9, v{CO2+1}, v{nx}, v9",
                    f"v_cvt_pk_bf16_f32 v8, v8, -v9",
                    lambda em_, r=r: em_.lds(f"ds_write_b32 v6, v8 offset:{144*r}")])
            cur = nx
        def rd_ht(em_):
            em_.e("s_waitcnt lgkmcnt(0)"); em_.lg_done = em_.lg
            for s_ in range(4): holder["ht"] = em_.lds(f"ds_read_b128 {rng(XF+4*s_,4)}, v6 offset:{32*s_}")
        st.add([f"v_mul_u32_u24 v6, 144, v{VPI}", "v_lshrrev_b32 v7, 5, v0", "v_lshl_add_u32 v6, v7, 4, v6", "v_add_u32 v6, s90, v6", rd_ht,
                lambda em_: em_.wait_lg(holder["ht"]),
                "s_lshl_b32 s90, s7, 12", "s_add_u32 s90, s90, s68"])
        for s_ in range(4):
            st.add([lambda em_, s_=s_: em_.vmem(f"buffer_store_dwordx4 {rng(XF+4*s_,4)}, v{VLANE16}, s[20:23], s90 offen offset:{1024*s_}")])
        st.add([("after", "p2done")])
        st.add(corr(7, 12, 112, "wa", 2) + ffn_epi(112, 82, 0))
    NU = len(units)
    rd_seq = {}
    done_bar = set()
    def nr_of(i): return 6 if (ch == 1 or units[i]["p"] == 0) else 3
    slot_of = {}
    def issue_reads(i):
        u = units[i]
        if u["bar"] and u["bar"] not in done_bar:
            barrier(u["bar"]); done_bar.add(u["bar"])
        slot_of[i] = i % nr_of(i) if nr_of(i) == 6 else (i % 3)
        if u["xr"]: x_read(*u["xr"])
        rd_seq[i] = u["rd"](WR + 4*slot_of[i])
    nxt = 0
    def look(i): return nr_of(i) - 1
    for i in range(NU):
        u = units[i]
        while nxt < NU and nxt <= i + min(look(i), look(nxt)):
            sl = nxt % nr_of(nxt) if nr_of(nxt) == 6 else nxt % 3
            prev = [k for k in range(max(0, nxt-6), nxt) if slot_of.get(k) == sl]
            if prev and prev[-1] >= i: break
            issue_reads(nxt); nxt += 1
        em.wait_lg(rd_seq[i])
        first = (u["ks"] == 0)
        if u["p"] == 2 and first and ch == 1: st.flush_until("acc64_free")
        if u["p"] == 2 and first and ch == 0: st.flush_until("segregs_free")
        c = "0" if first else rng(u["acc"], 16)
        w = rng(WR + 4*slot_of[i], 4); x = rng(xf(u["ks"]), 4)
        if u["ori"] == "wa": e(f"v_mfma_f32_32x32x16_bf16 {rng(u['acc'],16)}, {w}, {x}, {c}")
        else: e(f"v_mfma_f32_32x32x16_bf16 {rng(u['acc'],16)}, {x}, {w}, {c}")
        last_of_pass = (i + 1 == NU) or units[i+1]["p"] != u["p"]
        if last_of_pass: st.signal(f"p{u['p']}done")
        if u["p"] == 2: st.signal(f"p2s{u['ks']}")
        st.fill(NF[ch])
    st.flush()
    e("s_branch K1_FIN")
    return em.text()
```

```python
from common import *
def gen_k2(name="k2_kernel", DEPTH=8):
    em = Em(); e = em.e
    NW = 4; KSW = NKS // NW
    L = em.L
    L.append(f".globl {name}\n.p2align 8\n.type {name},@function\n{name}:")
    e("s_cmp_ge_u32 s2, 256")
    e("s_cbranch_scc1 K2_END")
    if DIAG: e("s_memrealtime s[60:61]"); e("s_memtime s[64:65]")
    e("s_load_dwordx2 s[32:33], s[0:1], %d" % KA['ws'])
    e("s_load_dwordx2 s[34:35], s[0:1], %d" % KA['x'])
    e("s_load_dwordx2 s[36:37], s[0:1], %d" % KA['out'])
    e("s_load_dwordx2 s[38:39], s[0:1], %d" % KA['dsk'])
    e("v_lshrrev_b32 v1, 6, v0")
    e("v_and_b32 v0, 63, v0")
    e("v_lshlrev_b32 v2, 4, v0")
    e("v_readfirstlane_b32 s3, v1")
    e("s_and_b32 s4, s2, 7")
    e("s_lshr_b32 s5, s2, 3")
    e("s_lshr_b32 s6, s4, 1")
    e("s_and_b32 s7, s4, 1")
    e("s_lshl_b32 s6, s6, 3")
    e("s_lshr_b32 s40, s5, 2")
    e("s_add_u32 s6, s6, s40")
    e("s_lshl_b32 s7, s7, 2")
    e("s_and_b32 s40, s5, 3")
    e("s_add_u32 s7, s7, s40")
    import os
    if os.environ.get("K2SAME") == "1":
        e("s_mov_b32 s6, 0"); e("s_mov_b32 s7, 0")
    if os.environ.get("K2SAME") == "2":
        e("s_mov_b32 s6, s4"); e("s_mov_b32 s7, s4")
    e(f"s_mul_i32 s41, s3, {KSW*1024}")
    e(f"s_mul_i32 s42, s6, {2*NKS*1024}")
    e("s_add_u32 s42, s42, s41")
    e(f"s_add_u32 s43, s42, {NKS*1024}")
    e(f"s_mul_i32 s44, s7, {2*NKS*1024}")
    e("s_add_u32 s44, s44, s41")
    e(f"s_add_u32 s45, s44, {NKS*1024}")
    e("s_waitcnt lgkmcnt(0)")
    srd(em, 8, 32, 33, SZ_ACT, OFF_ACT)
    srd(em, 12, 32, 33, SZ_WT, OFF_WT)
    srd(em, 16, 34, 35, NROW*D*2)
    srd(em, 20, 36, 37, NROW*D*4)
    srd(em, 24, 32, 33, SZ_ST, OFF_ST)
    srd(em, 28, 38, 39, D*2)
    ACC = 16
    FR = 80
    def acc(a,b): return ACC + (2*a+b)*16
    def rng(r,n): return f"v[{r}:{r+n-1}]"
    seqs = {}
    def issue(ks):
        slot = ks % DEPTH
        if ks % 4 == 0 and ks > 0:
            for s in (42,43,44,45): e(f"s_add_u32 s{s}, s{s}, 4096")
        o = (ks % 4)*1024
        r = FR + slot*16
        em.vmem(f"buffer_load_dwordx4 {rng(r,4)}, v2, s[12:15], s44 offen offset:{o}")
        em.vmem(f"buffer_load_dwordx4 {rng(r+8,4)}, v2, s[8:11], s42 offen offset:{o}")
        em.vmem(f"buffer_load_dwordx4 {rng(r+4,4)}, v2, s[12:15], s45 offen offset:{o}")
        seqs[ks] = em.vmem(f"buffer_load_dwordx4 {rng(r+12,4)}, v2, s[8:11], s43 offen offset:{o}")
    for ks in range(min(DEPTH, KSW)): issue(ks)
    EP = FR + DEPTH*16
    e("v_and_b32 v3, 31, v0")
    e("v_lshrrev_b32 v4, 5, v0")
    e("v_bfe_u32 v5, v3, 2, 1")
    e("v_lshlrev_b32 v5, 4, v5")
    e("v_lshrrev_b32 v6, 3, v3")
    e("v_lshl_add_u32 v5, v6, 2, v5")
    e("v_and_b32 v6, 3, v3")
    e("v_add_u32 v5, v5, v6")
    e("s_and_b32 s46, s3, 1")
    e("s_lshr_b32 s47, s3, 1")
    e("s_lshl_b32 s48, s6, 6")
    e("s_lshl_b32 s46, s46, 5")
    e("s_add_u32 s48, s48, s46")
    e("v_add_u32 v5, s48, v5")
    e("s_lshl_b32 s49, s7, 6")
    e("s_lshl_b32 s47, s47, 5")
    e("s_add_u32 s49, s49, s47")
    e("v_lshlrev_b32 v6, 2, v4")
    e("v_add_u32 v6, s49, v6")
    e("v_lshlrev_b32 v7, 3, v5")
    e("v_lshlrev_b32 v8, 10, v5")
    e("v_lshl_add_u32 v8, v6, 1, v8")
    e("v_lshlrev_b32 v9, 1, v6")
    e("v_lshlrev_b32 v10, 11, v5")
    e("v_lshl_add_u32 v10, v6, 2, v10")
    XS = EP; DS = EP+8; ST = EP+16
    sq_st = em.vmem(f"buffer_load_dwordx2 {rng(ST,2)}, v7, s[24:27], 0 offen")
    for q in range(4):
        em.vmem(f"buffer_load_dwordx2 {rng(XS+2*q,2)}, v8, s[16:19], 0 offen offset:{16*q}")
    for q in range(4):
        sq_ep = em.vmem(f"buffer_load_dwordx2 {rng(DS+2*q,2)}, v9, s[28:31], 0 offen offset:{16*q}")
    first = True
    for ks in range(KSW):
        em.wait_vm(seqs[ks])
        r = FR + (ks % DEPTH)*16
        for a in range(2):
            for b in range(2):
                c = "0" if ks == 0 else rng(acc(a,b),16)
                e(f"v_mfma_f32_32x32x16_bf16 {rng(acc(a,b),16)}, {rng(r+4*a,4)}, {rng(r+8+4*b,4)}, {c}")
        if ks + DEPTH < KSW: issue(ks + DEPTH)
    e("s_nop 15");
    e("s_lshl_b32 s50, s3, 12")
    e("v_add_u32 v11, s50, v2")
    for q in range(4):
        for r4 in range(4):
            em.lds(f"ds_write_b128 v11, {rng(ACC+q*16+r4*4,4)} offset:{q*16384 + r4*1024}")
    e("s_waitcnt lgkmcnt(0)"); em.lg_done = em.lg
    e("s_barrier")
    e("s_lshl_b32 s50, s3, 14")
    e("v_add_u32 v11, s50, v2")
    RD = FR
    for w in range(4):
        for r4 in range(4):
            em.lds(f"ds_read_b128 {rng(RD+w*16+r4*4,4)}, v11 offset:{w*4096 + r4*1024}")
    em.wait_vm(sq_ep)
    T = EP + 20
    e(f"v_lshlrev_b32 v12, 16, v{ST}")
    e(f"v_and_b32 v13, 0xffff0000, v{ST}")
    e("v_rcp_f32 v13, v13")
    RES = ACC
    for q in range(4):
        for d2 in range(2):
            xr = XS + 2*q + d2; dr = DS + 2*q + d2
            e(f"v_lshlrev_b32 v{T}, 16, v{xr}")
            e(f"v_and_b32 v{T+1}, 0xffff0000, v{xr}")
            e(f"v_sub_f32 v{T+2}, v{T}, v12")
            e(f"v_sub_f32 v{T+3}, v{T+1}, v12")
            e(f"v_cvt_pk_bf16_f32 v{T+2}, v{T+2}, v{T+3}")
            e(f"v_lshlrev_b32 v{T+3}, 16, v{T+2}")
            e(f"v_and_b32 v{T+2}, 0xffff0000, v{T+2}")
            e(f"v_mul_f32 v{T+3}, v{T+3}, v13")
            e(f"v_mul_f32 v{T+2}, v{T+2}, v13")
            e(f"v_cvt_pk_bf16_f32 v{T+2}, v{T+3}, v{T+2}")
            e(f"v_lshlrev_b32 v{T+3}, 16, v{T+2}")
            e(f"v_and_b32 v{T+2}, 0xffff0000, v{T+2}")
            e(f"v_lshlrev_b32 v{T+4}, 16, v{dr}")
            e(f"v_and_b32 v{T+5}, 0xffff0000, v{dr}")
            e(f"v_mul_f32 v{T+3}, v{T+3}, v{T+4}")
            e(f"v_mul_f32 v{T+2}, v{T+2}, v{T+5}")
            e(f"v_cvt_pk_bf16_f32 v{T+2}, v{T+3}, v{T+2}")
            e(f"v_lshlrev_b32 v{T+3}, 16, v{T+2}")
            e(f"v_and_b32 v{T+2}, 0xffff0000, v{T+2}")
            e(f"v_add_f32 v{RES+4*q+2*d2}, v{T+3}, v{T}")
            e(f"v_add_f32 v{RES+4*q+2*d2+1}, v{T+2}, v{T+1}")
    e("s_waitcnt lgkmcnt(0)"); em.lg_done = em.lg
    for i in range(16):
        e(f"v_add_f32 v{RD+i}, v{RD+i}, v{RD+16+i}")
        e(f"v_add_f32 v{RD+32+i}, v{RD+32+i}, v{RD+48+i}")
    for i in range(16):
        e(f"v_add_f32 v{RD+i}, v{RD+i}, v{RD+32+i}")
    for i in range(16):
        e(f"v_add_f32 v{RD+i}, v{RD+i}, v{RES+i}")
    for q in range(4):
        em.vmem(f"buffer_store_dwordx4 {rng(RD+4*q,4)}, v10, s[20:23], 0 offen offset:{32*q}")
    if DIAG:
        e("s_waitcnt vmcnt(0)")
        e("s_memrealtime s[62:63]"); e("s_memtime s[66:67]")
        e("s_waitcnt lgkmcnt(0)")
        e("s_cmp_lg_u32 s3, 0")
        e("s_cbranch_scc1 K2_END")
        e("v_mov_b32 v20, s60"); e("v_mov_b32 v21, s62"); e("s_sub_u32 s66, s66, s64"); e("v_mov_b32 v22, s66"); e("v_mov_b32 v23, 0")
        e("s_lshl_b32 s50, s2, 5")
        e(f"s_add_u32 s50, s50, {OFF_TS + 8192}")
        e("v_mov_b32 v24, s50")
        e("s_mov_b64 exec, 1")
        e("global_store_dwordx4 v24, v[20:23], s[32:33]")
    em.lab("K2_END")
    e("s_endpgm")
    nv = T + 8
    return em.text(), kd(name, nv), 65536
```

```python
import sys
from common import *
from k2 import gen_k2
HEADER = open("parallel_sum__ssm_conv_s5__glu_gated_swiglu__prompt.s.ref").read().split("; Override launch geometry")[0]
def build(kernels, path):
    s = HEADER
    for (name, text, kdt, lds, grid, block) in kernels:
        s += f"; @launch kernel={name} grid=({grid},1,1) block=({block},1,1) lds={lds}\n"
    s += '.amdgcn_target "amdgcn-amd-amdhsa--gfx950"\n.text\n'
    for k in kernels: s += k[1]
    s += '.section .rodata,"a"\n'
    for k in kernels: s += k[2]
    open(path, "w").write(s)
if __name__ == "__main__":
    which = sys.argv[1]; path = sys.argv[2]
    ks = []
    if "1" in which:
        from k1 import gen_k1
        t, k, lds = gen_k1(); ks.append(("k1_kernel", t, k, lds, 256, 512))
    if "2" in which:
        t, k, lds = gen_k2(); ks.append(("k2_kernel", t, k, lds, 256, 256))
    build(ks, path)
```

```python
from common import *
import os
U = 4096
SLAB = [0, 8*U, 16*U, 24*U]
MREG = 32*U
MISC = 38*U
L_NONCE = MISC
L_SEG = MISC + 64
L_RS = MISC + 64 + 2048
L_CSF = MISC + 64 + 2048 + 512
LDS_TOTAL = 40*U
MINI = MREG
def X_base(kb): return SLAB[kb % 4]
def S0_base(kb): return SLAB[kb % 4] + 4*U
def A0_base(kb): return SLAB[kb % 4] + 6*U
T1_base = [MREG, MREG+2*U, MREG+4*U, SLAB[0], SLAB[0]+2*U, SLAB[0]+4*U, SLAB[0]+6*U, SLAB[1]+4*U]
T4_base = [SLAB[1], SLAB[2], SLAB[2]+4*U, SLAB[3], SLAB[3]+4*U, MREG, SLAB[0], SLAB[0]+4*U]
HT_A = SLAB[1] + 4*U
HT_B = MREG + 4*U
O_ST, O_CS, O_E = 0, SZ_ST, SZ_ST + SZ_CS
O_DN = SZ_ST + SZ_CS + SZ_E
FUSED = int(os.environ.get('FUSED', '0'))
SC = ' sc0 sc1' if FUSED else ''
SPIN_MAX = 20000
env = lambda k, d: int(os.environ.get(k, str(d)))
PREF = env("PREF", 0); ROT = env("ROT", 0); VP2 = 26
CPF = env("CPF", 1)
NOTAG = env("NOTAG", 0)
ONLYST = env("ONLYST", 0)
FINE = env("FINE", 0)
NOBAR = env("NOBAR", 0)
NOCOMP = env("NOCOMP", 0); DQ_RATE = env("DQ_RATE", 1)
NF = {0: env("NF0", 8), 1: env("NF1", 5)}
MINI_AT = "B2"
SEG_BAR = "B8a"
GATHER_AT = "B5"
NFI = env("NFI", 8)
DMA_SCHED = {"B0": [("stage", 2), ("stage", 3), ("mini", 0)], "B1": [("stage", 4)], "B2": [("stage", 5)],
             "B3": [("stage", 6), ("t1", 0), ("t1", 1), ("t1", 2)],
             "B4": [("stage", 7)], "B5": [("t1", 3), ("t1", 4), ("t1", 5), ("t1", 6)], "B6": [("t1", 7), ("t4", 0)], "B7": [("t4", 1), ("t4", 2)],
             "B8": [("t4", 3), ("t4", 4)], "B8a": [("t4", 5)], "B9": [("t4", 6), ("t4", 7)]}
LOG2E = "0x3fb8aa3b"; NLOG2E = "0xbfb8aa3b"; INV2PI = "0x3e22f983"

def rng(r, n): return f"v[{r}:{r+n-1}]"

class Stream:
    def __init__(self, em):
        self.em = em; self.q = []; self.events = set()
    def add(self, items): self.q.extend(items)
    def signal(self, ev): self.events.add(ev)
    def _one(self):
        while self.q:
            it = self.q[0]
            if isinstance(it, tuple) and it[0] == "after":
                if it[1] in self.events: self.q.pop(0); continue
                return False
            if isinstance(it, tuple) and it[0] == "mark":
                self.q.pop(0); self.events.add("done:" + it[1]); continue
            self.q.pop(0)
            for x in (it if isinstance(it, list) else [it]):
                if callable(x): x(self.em)
                else: self.em.e(x)
            return True
        return False
    def fill(self, n):
        for _ in range(n):
            if not self._one(): break
    def flush_until(self, mark):
        while ("done:" + mark) not in self.events:
            if not self._one():
                if ("done:" + mark) in self.events: break
                raise RuntimeError(f"blocked flushing until {mark}: head {self.q[0] if self.q else None}")
    def flush(self):
        while self.q:
            if not self._one():
                if self.q: raise RuntimeError(f"blocked: {self.q[0]}")

VPI, VRS, VLANE16 = 16, 17, 27
VLRE, VLIM, VLDT = 1, 18, 19
VX0, VX1, VSB, VT2, VT4 = 20, 21, 22, 23, 24
VC1, VI2, VI2T = 20, 21, 22
VT1R = 25
VXR = 28; VXM = 28
VBR = 32
VT2A, VT2B, VT4A, VT4B = 36, 37, 38, 39
WR = 40
XF = 128
def xf(ks): return XF + 4*ks
STAG = 70
SKIP = [int(x) for x in os.environ.get("SKIP", "").split(",") if x]

def dma(em, srdreg, voff, soff_base, soff_add, m0_sreg, m0_add):
    if srdreg in SKIP: return max(em.vm - 1, 0)
    em.e(f"s_add_u32 m0, s{m0_sreg}, {m0_add}")
    if soff_base is None: em.e(f"s_mov_b32 s84, {soff_add}")
    else: em.e(f"s_add_u32 s84, s{soff_base}, {soff_add}")
    return em.vmem(f"buffer_load_dwordx4 v{voff}, s[{srdreg}:{srdreg+3}], s84 offen lds")
TA, TB = 36, 50
def ta(kb): return f"s{TA+kb}"
def tb(kb): return f"s{TB+kb}"
def dma_S0(em, kb, base=None): return dma(em, 12, VSB, None, ta(kb), 75, S0_base(kb) if base is None else base)
def dma_T2(em, kb, base, sreg): return dma(em, 16, VT2, sreg, tb(kb), 75, base)

slow_paths = []
def tagged_load(em, pre, insts, tagregs, label, maskpre=None):
    for p in pre: em.e(p)
    seqs = [em.vmem(i) for i in insts]
    def cmp_code():
        out = []
        for n, t in enumerate(tagregs):
            dst = "vcc" if n == 0 else "s[90:91]"
            out.append(f"v_cmp_ne_u32 {dst}, s{STAG}, v{t}")
            if maskpre is not None:
                out += maskpre(n)
                out.append(f"s_and_b64 {dst}, {dst}, s[92:93]")
            if n: out.append("s_or_b64 vcc, vcc, s[90:91]")
        return out
    def check(em2):
        em2.wait_vm(seqs[-1])
        if NOTAG: return
        for i in cmp_code(): em2.e(i)
        em2.e(f"s_cbranch_vccnz {label}_SLOW")
        em2.lab(f"{label}_OK")
        sp = [f"{label}_SLOW:", "    s_sleep 1"]
        sp += ["    " + i for i in pre] + ["    " + i for i in insts]
        sp.append("    s_waitcnt vmcnt(0)")
        sp += ["    " + i for i in cmp_code()]
        sp.append(f"    s_cbranch_vccz {label}_OK")
        sp.append("    s_add_u32 s32, s32, 1")
        sp.append(f"    s_cmp_lt_u32 s32, {SPIN_MAX}")
        sp.append(f"    s_cbranch_scc1 {label}_SLOW")
        sp.append(f"    s_branch {label}_OK")
        slow_paths.append("\n".join(sp))
    return check

def mini_dma_lines(C):
    L = []
    def e(x): L.append("    " + x)
    def d(*a):
        t = Em(); dma(t, *a); L.extend(t.L)
    e("s_cmp_eq_u32 s88, 0"); e(f"s_cbranch_scc1 K1_MINI0_{C}")
    e(f"s_mul_i32 s91, s89, {128*3584}")
    e("s_cmp_eq_u32 s88, 1"); e(f"s_cbranch_scc1 K1_MINI1_{C}")
    e("s_sub_u32 s90, s88, 2"); e("s_lshl_b32 s90, s90, 6"); e("s_add_u32 s90, s90, s81"); e("s_add_u32 s90, s90, s91")
    d(16, VT2, 90, 0, 75, MINI); d(16, VT2, 90, 64*3584, 75, MINI + 2*U)
    e(f"s_branch K1_MINIDONE_{C}")
    L.append(f"K1_MINI1_{C}:")
    e("s_add_u32 s90, s80, s91")
    d(16, VT2, 90, 0, 75, MINI); d(16, VT2, 90, 64*3584, 75, MINI + 2*U)
    e("s_add_u32 s90, s79, s91")
    e("v_lshrrev_b32 v2, 1, v0"); e("s_lshl_b32 s91, s4, 5"); e("v_add_u32 v2, s91, v2"); e("s_movk_i32 s91, 3584"); e("v_mul_lo_u32 v2, v2, s91")
    e("v_and_b32 v3, 1, v0"); e("v_lshl_add_u32 v2, v3, 4, v2")
    d(16, 2, 90, 0, 75, MINI + 4*U)
    e(f"s_branch K1_MINIDONE_{C}")
    L.append(f"K1_MINI0_{C}:")
    e("s_lshl_b32 s90, s89, 8")
    d(12, VSB, 90, 0, 75, MINI); d(12, VSB, 90, 128, 75, MINI + 2*U)
    L.append(f"K1_MINIDONE_{C}:")
    return L

def mini_compute(t2hi, bhi):
    L = []; a = L.append
    a("s_cmp_eq_u32 s88, 1"); a("s_cselect_b32 s90, 3, 2")
    a("s_cmp_ge_u32 s3, s90"); a("s_cbranch_scc1 K1_MCDONE")
    for i in range(4): a(f"v_mov_b32 v{2+i}, 0x3f803f80")
    a("s_cmp_eq_u32 s88, 0"); a("s_cbranch_scc1 K1_MC0")
    def mf(h):
        a("s_waitcnt lgkmcnt(0)")
        for k4 in range(4):
            c = "0" if (h == 0 and k4 == 0) else "v[112:127]"
            a(f"v_mfma_f32_32x32x16_bf16 v[112:127], v[2:5], v[{96+4*k4}:{99+4*k4}], {c}")
    a("s_cmp_eq_u32 s3, 2"); a("s_cbranch_scc1 K1_MC1N")
    a("s_lshl_b32 s90, s3, 5"); a(f"v_xor_b32 v6, s90, v{VT2A}"); a(f"v_add_u32 v6, {MINI - t2hi}, v6")
    for h in range(2):
        for k4 in range(4):
            o = h*2*U + k4*1024
            a(f"ds_read_b64_tr_b16 v[{96+4*k4}:{97+4*k4}], v6 offset:{o}")
            a(f"ds_read_b64_tr_b16 v[{98+4*k4}:{99+4*k4}], v6 offset:{o+256}")
        mf(h)
    a("s_branch K1_MCM")
    a("K1_MC1N:")
    a("v_bfe_u32 v6, v0, 4, 1"); a("v_lshlrev_b32 v6, 12, v6"); a("v_lshrrev_b32 v7, 5, v0"); a("v_bfe_u32 v8, v0, 2, 2"); a("v_lshl_add_u32 v7, v7, 3, v8")
    a("v_lshl_add_u32 v6, v7, 5, v6"); a("v_and_b32 v7, 3, v0"); a("v_lshl_add_u32 v6, v7, 3, v6"); a(f"v_add_u32 v6, {MINI + 4*U}, v6")
    for h in range(2):
        for k4 in range(4):
            o = (4*h + k4)*512
            a(f"ds_read_b64_tr_b16 v[{96+4*k4}:{97+4*k4}], v6 offset:{o}")
            a(f"ds_read_b64_tr_b16 v[{98+4*k4}:{99+4*k4}], v6 offset:{o+128}")
        mf(h)
    a("s_branch K1_MCM")
    a("K1_MC0:")
    a("s_lshl_b32 s90, s3, 12"); a(f"s_add_u32 s90, s90, {MINI - bhi}")
    for h in range(2):
        for k4 in range(4):
            a(f"v_add_u32 v6, s90, v{VBR + k4}")
            a(f"ds_read_b128 v[{96+4*k4}:{99+4*k4}], v6 offset:{h*2*U}")
        mf(h)
    a("K1_MCM:")
    a("s_nop 15"); a("s_nop 3")
    a("s_lshl_b32 s90, s88, 1"); a("s_add_u32 s90, s90, s3")
    a("s_cmp_eq_u32 s3, 2"); a("s_cselect_b32 s90, 8, s90")
    a("s_mul_i32 s91, s7, 9"); a("s_add_u32 s90, s90, s91"); a("s_lshl_b32 s90, s90, 10")
    a("s_lshr_b32 s91, s89, 1"); a("s_lshl_b32 s91, s91, 9"); a("s_add_u32 s90, s90, s91")
    a("s_and_b32 s91, s89, 1"); a("s_lshl_b32 s91, s91, 3"); a("s_add_u32 s90, s90, s91")
    a("v_mov_b32 v4, v112"); a(f"v_mov_b32 v5, s{STAG}")
    a(f"s_add_u32 s90, s90, {O_CS}")
    a("s_mov_b32 exec_hi, 0")
    a(f"buffer_store_dwordx2 v[4:5], v{VLANE16}, s[24:27], s90 offen sc0 sc1")
    a("s_mov_b64 exec, -1")
    a("K1_MCDONE:")
    return L

def side_job(R):
    ld = []; stl = []; a = ld.append
    hold = {}
    a("s_lshl_b32 s90, s6, 4"); a("s_add_u32 s90, s90, s7")
    a("s_mov_b32 s28, s60"); a("s_mov_b32 s29, s61"); a(f"s_mov_b32 s30, {F*D*2}"); a("s_mov_b32 s31, 0x00020000")
    a("v_and_b32 v2, 31, v0"); a("v_lshrrev_b32 v3, 5, v0"); a("v_lshlrev_b32 v4, 12, v3"); a("v_lshl_add_u32 v4, v2, 1, v4")
    for n, sdst in ((0, 33), (1, 87)):
        a("s_lshl_b32 s91, s4, 1"); a(f"s_add_u32 s91, s91, {n}"); a("s_min_u32 s91, s91, 6")
        a("s_mul_i32 s92, s90, 7"); a("s_add_u32 s92, s92, s91")
        a("s_mov_b32 s93, 38347923"); a("s_mul_hi_u32 s93, s92, s93")
        a("s_mul_i32 s94, s93, 112"); a("s_sub_u32 s94, s92, s94")
        a("s_lshl_b32 s95, s94, 14"); a("s_lshl_b32 s91, s93, 6"); a("s_add_u32 s95, s95, s91")
        for j in range(8):
            ro = (8*(j>>2) + (j&3))*1024
            if ro > 4095:
                a(f"s_add_u32 s91, s95, {ro & ~4095}")
                a(lambda em_, j=j, ro=ro, n=n: em_.vmem(f"buffer_load_ushort v{R+8*n+j}, v4, s[28:31], s91 offen offset:{ro & 4095}"))
            else:
                a(lambda em_, j=j, ro=ro, n=n: em_.vmem(f"buffer_load_ushort v{R+8*n+j}, v4, s[28:31], s95 offen offset:{ro}"))
        a(f"s_mul_i32 s{sdst}, s93, {NKS}"); a(f"s_add_u32 s{sdst}, s{sdst}, s94"); a(f"s_add_u32 s{sdst}, s{sdst}, 64"); a(f"s_lshl_b32 s{sdst}, s{sdst}, 10")
    a("s_lshl_b32 s93, s90, 2"); a("s_add_u32 s93, s93, s4"); a("s_lshr_b32 s94, s93, 6"); a("s_and_b32 s95, s93, 63")
    a("v_lshlrev_b32 v4, 10, v2"); a("v_lshl_add_u32 v4, v3, 3, v4")
    a("s_lshl_b32 s91, s94, 15"); a("s_lshl_b32 s90, s95, 4"); a("s_add_u32 s91, s91, s90")
    a("s_mov_b32 s28, s46"); a("s_mov_b32 s29, s47"); a(f"s_mov_b32 s30, {D*P*2}")
    a(lambda em_: em_.vmem(f"buffer_load_dwordx2 {rng(R+16,2)}, v4, s[28:31], s91 offen"))
    a("s_mov_b32 s28, s48"); a("s_mov_b32 s29, s49")
    a(lambda em_: hold.__setitem__("sq", em_.vmem(f"buffer_load_dwordx2 {rng(R+18,2)}, v4, s[28:31], s91 offen")))
    a(f"s_mul_i32 s85, s94, {NKS}"); a("s_add_u32 s85, s85, s95"); a("s_lshl_b32 s85, s85, 10")
    b = stl.append
    b(lambda em_: em_.wait_vm(hold["sq"]))
    b([f"s_add_u32 s28, s66, {OFF_WT}", "s_addc_u32 s29, s67, 0"])
    b(f"s_mov_b32 s30, {SZ_WT}")
    for n, sdst in ((0, 33), (1, 87)):
        for j in range(4): b(f"v_lshl_or_b32 v{R+8*n+j}, v{R+8*n+1+2*j}, 16, v{R+8*n+2*j}")
        b(lambda em_, n=n, sdst=sdst: em_.vmem(f"buffer_store_dwordx4 {rng(R+8*n,4)}, v{VLANE16}, s[28:31], s{sdst} offen{SC}"))
    b("s_mov_b32 s90, 0x05040100"); b("s_mov_b32 s91, 0x07060302")
    b(f"v_perm_b32 v{R+4}, v{R+18}, v{R+16}, s90"); b(f"v_perm_b32 v{R+5}, v{R+18}, v{R+16}, s91")
    b(f"v_perm_b32 v{R+6}, v{R+19}, v{R+17}, s90"); b(f"v_perm_b32 v{R+7}, v{R+19}, v{R+17}, s91")
    b(lambda em_: em_.vmem(f"buffer_store_dwordx4 {rng(R+4,4)}, v{VLANE16}, s[28:31], s85 offen{SC}"))
    b("s_nop 1")
    return ld, stl

def gen_k1(name="k1_kernel"):
    slow_paths.clear()
    top = Em(); e = top.e
    top.L.append(f".globl {name}\n.p2align 8\n.type {name},@function\n{name}:")
    e("s_cmp_ge_u32 s2, 256"); e("s_cbranch_scc1 K1_END")
    if DIAG: e("s_memrealtime s[96:97]"); e("s_memtime s[98:99]")
    e("s_mov_b32 s32, 0")
    e("s_load_dwordx16 s[36:51], s[0:1], 0"); e("s_load_dwordx16 s[52:67], s[0:1], 64")
    if CPF:
        e("s_getpc_b64 s[90:91]")
        top.lab("K1_PC")
        e("v_lshrrev_b32 v2, 6, v0"); e("s_lshr_b32 s92, s2, 3"); e("s_lshl_b32 s92, s92, 3"); e("v_add_u32 v2, s92, v2")
        e("v_lshlrev_b32 v2, 8, v2"); e("v_and_b32 v3, 63, v0"); e("v_lshl_add_u32 v2, v3, 2, v2")
        e("s_mov_b32 s92, K1_CODE_END-K1_PC-4"); e("v_min_u32 v2, s92, v2")
        e("global_load_dword v126, v2, s[90:91]")
    e("v_lshrrev_b32 v1, 6, v0"); e("v_and_b32 v0, 63, v0"); e("s_nop 0"); e("v_readfirstlane_b32 s3, v1")
    e("s_and_b32 s72, s2, 7"); e("s_lshr_b32 s73, s2, 3")
    e("s_lshr_b32 s6, s72, 1"); e("s_lshl_b32 s6, s6, 2"); e("s_lshr_b32 s74, s73, 3"); e("s_add_u32 s6, s6, s74")
    e("s_and_b32 s7, s72, 1"); e("s_lshl_b32 s7, s7, 3"); e("s_and_b32 s74, s73, 7"); e("s_add_u32 s7, s7, s74")
    e("s_and_b32 s4, s3, 3"); e("s_lshr_b32 s5, s3, 2")
    e("s_lshl_b32 s75, s3, 10"); e("s_lshl_b32 s76, s3, 11")
    e("s_lshl_b32 s77, s5, 13"); e("s_lshl_b32 s74, s4, 11"); e("s_add_u32 s77, s77, s74")
    e("s_lshl_b32 s78, s6, 17")
    e("s_lshr_b32 s74, s7, 2"); e("s_mul_i32 s74, s74, 896"); e("s_and_b32 s83, s7, 3")
    def sel4(dst, vals):
        e(f"s_mov_b32 s{dst}, {vals[0]}")
        for q in (1, 2, 3):
            e(f"s_cmp_eq_u32 s83, {q}"); e(f"s_cselect_b32 s{dst}, {vals[q]}, s{dst}")
        e(f"s_add_u32 s{dst}, s{dst}, s74")
    sel4(80, (128, 384, 448, 704)); sel4(81, (0, 256, 512, 768)); sel4(82, (192, 192, 640, 640)); sel4(79, (192, 224, 640, 672))
    e("v_lshrrev_b32 v2, 3, v0"); e("v_and_b32 v3, 7, v0"); e("v_lshrrev_b32 v4, 1, v2"); e("v_xor_b32 v5, v3, v4")
    e("s_lshl_b32 s74, s3, 14")
    e("v_lshlrev_b32 v6, 10, v2"); e("v_lshl_add_u32 v6, v5, 4, v6"); e(f"v_add_u32 v{VX0}, s74, v6")
    e("v_xor_b32 v7, 4, v5"); e("v_lshlrev_b32 v8, 10, v2"); e("v_lshl_add_u32 v8, v7, 4, v8")
    e("s_add_u32 s83, s74, 8192"); e(f"v_add_u32 v{VX1}, s83, v8")
    e("s_and_b32 s74, s4, 1"); e("s_lshl_b32 s74, s74, 2"); e("v_xor_b32 v7, s74, v5")
    e("v_lshlrev_b32 v8, 10, v2"); e("v_lshl_add_u32 v8, v7, 4, v8")
    e("s_lshl_b32 s74, s7, 15"); e("s_lshl_b32 s83, s4, 13"); e("s_add_u32 s74, s74, s83"); e(f"v_add_u32 v{VSB}, s74, v8")
    e("v_lshrrev_b32 v6, 2, v0"); e("s_lshl_b32 s74, s4, 4"); e("v_add_u32 v6, s74, v6")
    e("s_movk_i32 s83, 3584"); e("v_mul_lo_u32 v6, v6, s83")
    e("v_and_b32 v7, 3, v0"); e("s_lshl_b32 s74, s5, 1"); e("v_xor_b32 v7, s74, v7"); e(f"v_lshl_add_u32 v{VT2}, v7, 4, v6")
    e("v_bfe_u32 v6, v2, 1, 1"); e("s_lshl_b32 s74, s5, 1"); e("v_or_b32 v6, s74, v6"); e("v_lshlrev_b32 v6, 1, v6"); e("v_xor_b32 v6, v3, v6")
    e("s_lshl_b32 s74, s4, 4"); e("v_add_u32 v7, s74, v2"); e("v_mul_lo_u32 v7, v7, s83"); e(f"v_lshl_add_u32 v{VT4}, v6, 4, v7")
    e(f"v_lshlrev_b32 v{VLANE16}, 4, v0")
    e("s_waitcnt lgkmcnt(0)")
    srd(top, 8, 36, 37, NROW*D*2)
    e("s_cmp_eq_u32 s5, 0")
    e("s_cselect_b32 s12, s42, s44"); e("s_cselect_b32 s13, s43, s45")
    e(f"s_mov_b32 s14, {P*D*2}"); e("s_mov_b32 s15, 0x00020000")
    e("s_cselect_b32 s16, s56, s58"); e("s_cselect_b32 s17, s57, s59")
    e(f"s_mov_b32 s18, {D*F*2}"); e("s_mov_b32 s19, 0x00020000")
    srd(top, 20, 66, 67, SZ_ACT, OFF_ACT)
    srd(top, 24, 66, 67, SZ_ST+SZ_CS+SZ_E+SZ_DN, OFF_ST)
    if DIAG: e("s_memtime s[34:35]"); e("s_waitcnt lgkmcnt(0)"); e("s_sub_u32 s95, s34, s98")
    e("s_cmp_lg_u32 s2, 0"); e("s_cbranch_scc1 K1_NONONCE")
    e("s_cmp_lg_u32 s3, 0"); e("s_cbranch_scc1 K1_NONONCE")
    e("s_memrealtime s[86:87]"); e("s_waitcnt lgkmcnt(0)"); e("s_or_b32 s86, s86, 1")
    e("v_mov_b32 v6, s86"); e("v_mov_b32 v7, 0"); e("s_mov_b64 exec, 1")
    e("global_store_dword v7, v6, s[64:65] sc0 sc1"); e("s_mov_b64 exec, -1")
    top.lab("K1_NONONCE")
    e("s_cmp_lg_u32 s3, 7"); e("s_cbranch_scc1 K1_NOPOLL")
    e("v_mov_b32 v7, 0"); e("global_load_dword v12, v7, s[64:65] sc1")
    top.lab("K1_NOPOLL")
    e("s_lshr_b32 s88, s6, 2"); e("s_and_b32 s89, s6, 3")
    e("s_lshl_b32 s90, s7, 3"); e("s_add_u32 s90, s90, s3"); e("s_lshl_b32 s90, s90, 10"); e("s_add_u32 s90, s90, s78")
    VST = 48; VNON = 12
    top.vmem(f"buffer_load_dwordx4 {rng(VST,4)}, v{VLANE16}, s[8:11], s90 offen")
    sq_stage = {}
    def stage_now(kb):
        dma(top, 8, VX0, 78, ta(kb), 76, X_base(kb)); dma(top, 8, VX1, 78, ta(kb), 76, X_base(kb) + 1024)
        dma_S0(top, kb); return dma_T2(top, kb, A0_base(kb), 80)
    e("s_mov_b32 s28, s38"); e("s_mov_b32 s29, s39"); e(f"s_mov_b32 s30, {P*2}"); e("s_mov_b32 s31, 0x00020000")
    e("v_and_b32 v6, 31, v0"); e("s_lshl_b32 s90, s7, 6"); e("v_lshl_add_u32 v6, v6, 1, s90")
    top.vmem(f"buffer_load_ushort v{VLRE}, v6, s[28:31], 0 offen")
    e("s_mov_b32 s28, s40"); e("s_mov_b32 s29, s41")
    top.vmem(f"buffer_load_ushort v{VLIM}, v6, s[28:31], 0 offen")
    e("s_mov_b32 s28, s50"); e("s_mov_b32 s29, s51")
    sq_lam = top.vmem(f"buffer_load_ushort v{VLDT}, v6, s[28:31], 0 offen")
    if ROT:
        e("s_lshr_b32 s90, s73, 3"); e("s_lshl_b32 s90, s90, 1"); e("s_add_u32 s90, s90, s73")
    else:
        e("s_mov_b32 s90, 0")
    for kb in range(8):
        e(f"s_add_u32 s91, s90, {kb}"); e("s_and_b32 s91, s91, 7"); e(f"s_lshl_b32 s{TA+kb}, s91, 7"); e(f"s_mul_i32 s{TB+kb}, s91, {64*3584}")
    sq_stage[0] = stage_now(0); sq_stage[1] = stage_now(1)
    if PREF:
        e("s_cmp_lt_u32 s3, 2"); e("s_cselect_b32 s28, s36, s56"); e("s_cselect_b32 s29, s37, s57"); e(f"s_mov_b32 s30, {D*F*2}"); e(f"s_cselect_b32 s30, {NROW*D*2}, s30")
        e("s_cmp_eq_u32 s3, 2"); e("s_cselect_b32 s28, s42, s28"); e("s_cselect_b32 s29, s43, s29"); e(f"s_cselect_b32 s30, {P*D*2}, s30")
        e("s_cmp_eq_u32 s3, 3"); e("s_cselect_b32 s28, s44, s28"); e("s_cselect_b32 s29, s45, s29"); e(f"s_cselect_b32 s30, {P*D*2}, s30")
        e("s_cmp_ge_u32 s3, 6"); e("s_cselect_b32 s28, s58, s28"); e("s_cselect_b32 s29, s59, s29")
        e("s_mov_b32 s31, 0x00020000")
        e("v_lshrrev_b32 v2, 2, v0"); e("v_and_b32 v3, 3, v0")
        e("s_cmp_ge_u32 s3, 4"); e("s_cbranch_scc1 K1_PFW")
        e("v_min_u32 v2, 7, v2")
        e("s_lshr_b32 s90, s72, 1"); e("s_lshl_b32 s90, s90, 9"); e("s_lshl_b32 s91, s73, 4"); e("s_add_u32 s90, s90, s91")
        e("s_and_b32 s91, s3, 1"); e("s_lshl_b32 s91, s91, 3"); e("s_add_u32 s90, s90, s91")
        e("s_and_b32 s91, s72, 1"); e("s_lshl_b32 s91, s91, 8"); e("s_lshl_b32 s92, s73, 3"); e("s_add_u32 s91, s91, s92")
        e("s_cmp_lt_u32 s3, 2"); e("s_cselect_b32 s90, s90, s91")
        e("v_add_u32 v2, s90, v2"); e("v_lshlrev_b32 v2, 10, v2"); e("v_lshl_add_u32 v2, v3, 5, v2")
        e("s_movk_i32 s33, 128")
        e("s_branch K1_PFGO")
        top.lab("K1_PFW")
        e("v_min_u32 v2, 5, v2")
        e("v_cmp_lt_u32 vcc, 2, v2"); e("v_lshlrev_b32 v2, 1, v2"); e("v_addc_co_u32 v2, vcc, 1, v2, vcc")
        e("s_and_b32 s91, s72, 1"); e("s_mul_i32 s91, s91, 14"); e("v_add_u32 v2, s91, v2"); e("v_lshlrev_b32 v2, 7, v2"); e("v_lshl_add_u32 v2, v3, 5, v2")
        e("s_lshl_b32 s90, s73, 1"); e("s_and_b32 s91, s3, 1"); e("s_add_u32 s90, s90, s91"); e("s_mul_i32 s90, s90, 3584"); e("v_add_u32 v2, s90, v2")
        e(f"s_mov_b32 s33, {64*3584}")
        top.lab("K1_PFGO")
        for kb in range(2, 8):
            e(f"s_mul_i32 s90, s33, {kb}")
            top.vmem("buffer_load_dword v127, v2, s[28:31], s90 offen")
        e("v_bfe_u32 v2, v0, 2, 2"); e("s_lshr_b32 s90, s4, 1"); e("s_lshl_b32 s91, s90, 2"); e("v_add_u32 v2, s91, v2"); e("v_lshlrev_b32 v2, 1, v2")
        e("v_subrev_u32 v2, s90, v2")
        e("s_and_b32 s91, s72, 1"); e("s_mul_i32 s91, s91, 14"); e("v_add_u32 v2, s91, v2"); e("v_lshlrev_b32 v2, 7, v2"); e("v_lshl_add_u32 v2, v3, 5, v2")
        e("v_lshrrev_b32 v3, 4, v0"); e(f"s_mov_b32 s90, {64*3584}"); e("v_mul_lo_u32 v3, v3, s90"); e("v_add_u32 v2, v2, v3")
        e("s_lshl_b32 s90, s73, 1"); e("s_and_b32 s91, s4, 1"); e("s_add_u32 s90, s90, s91"); e("s_mul_i32 s90, s90, 3584"); e(f"v_add_u32 v{VP2}, s90, v2")
        if PREF == 2:
            top.vmem(f"buffer_load_dword v127, v{VP2}, s[16:19], 0 offen")
            e(f"s_mov_b32 s90, {256*3584}")
            top.vmem(f"buffer_load_dword v127, v{VP2}, s[16:19], s90 offen")
    e("v_and_b32 v2, 31, v0"); e("v_lshrrev_b32 v3, 5, v0")
    e("v_bfe_u32 v4, v2, 2, 1"); e("v_lshlrev_b32 v4, 4, v4")
    e("v_lshrrev_b32 v5, 3, v2"); e("v_lshl_add_u32 v4, v5, 2, v4")
    e("v_and_b32 v5, 3, v2"); e(f"v_add_u32 v{VPI}, v4, v5")
    e(f"v_bfe_u32 v5, v{VPI}, 1, 3"); e("v_xor_b32 v5, v3, v5")
    e(f"v_lshlrev_b32 v6, 7, v{VPI}"); e("v_lshl_add_u32 v6, v5, 4, v6")
    e("s_lshl_b32 s90, s4, 12"); e("v_add_u32 v6, s90, v6")
    for s4 in range(4): e(f"v_xor_b32 v{VXR+s4}, {32*s4}, v6")
    e("v_bfe_u32 v2, v0, 4, 1"); e("v_lshrrev_b32 v3, 5, v0"); e("v_bfe_u32 v4, v0, 2, 2"); e("v_and_b32 v5, 3, v0")
    e("v_lshl_add_u32 v6, v3, 3, v4")
    e("v_lshlrev_b32 v7, 6, v6"); e("v_lshl_add_u32 v7, v5, 3, v7"); e("v_lshl_add_u32 v7, v2, 12, v7")
    e(f"v_lshl_add_u32 v{VT2A}, v2, 5, v7"); e(f"v_xor_b32 v{VT2B}, 32, v{VT2A}")
    e("s_and_b32 s90, s7, 1"); e("s_lshl_b32 s90, s90, 5"); e(f"v_xor_b32 v{VT1R}, s90, v{VT2A}")
    e("v_lshlrev_b32 v7, 7, v6"); e("v_lshl_add_u32 v7, v5, 3, v7"); e("v_lshl_add_u32 v7, v2, 13, v7")
    e("v_bfe_u32 v8, v4, 1, 1"); e("v_lshl_or_b32 v8, v2, 1, v8"); e("v_lshl_add_u32 v7, v8, 5, v7")
    e("s_lshl_b32 s90, s5, 6"); e(f"v_xor_b32 v{VT4A}, s90, v7"); e(f"v_xor_b32 v{VT4B}, 32, v{VT4A}")
    e("v_and_b32 v2, 31, v0"); e("v_lshrrev_b32 v3, 5, v0")
    e("v_bfe_u32 v5, v2, 1, 3"); e("v_xor_b32 v5, v3, v5")
    e("v_lshlrev_b32 v6, 7, v2"); e("v_lshl_add_u32 v6, v5, 4, v6")
    for s4 in range(4): e(f"v_xor_b32 v{VBR+s4}, {32*s4}, v6")
    top.wait_vm(0)
    if DIAG: e("s_memtime s[34:35]"); e("s_waitcnt lgkmcnt(0)"); e("s_sub_u32 s94, s34, s98")
    e("s_mov_b32 s90, 0x3f803f80"); e("v_mov_b32 v2, 0"); e("v_mov_b32 v3, 0")
    for i in range(4):
        e(f"v_dot2_f32_bf16 v2, v{VST+i}, s90, v2"); e(f"v_dot2_f32_bf16 v3, v{VST+i}, v{VST+i}, v3")
    e("s_nop 2")
    for dpp in ("row_shr:1", "row_shr:2", "row_shr:4", "row_shr:8", "row_bcast:15 row_mask:0xa", "row_bcast:31 row_mask:0xc"):
        rm = "" if "row_mask" in dpp else " row_mask:0xf"
        e(f"v_add_f32_dpp v2, v2, v2 {dpp}{rm} bank_mask:0xf"); e(f"v_add_f32_dpp v3, v3, v3 {dpp}{rm} bank_mask:0xf"); e("s_nop 1")
    e("v_mul_f32 v2, 0x3b000000, v2"); e("v_mul_f32 v3, 0x3b000000, v3"); e("v_fma_f32 v3, -v2, v2, v3"); e("v_max_f32 v3, 0, v3")
    e("v_cvt_pk_bf16_f32 v4, v2, v3"); e("v_and_b32 v5, 0xffff0000, v4"); e("v_add_f32 v5, 0x3727c5ac, v5")
    e("v_cvt_pk_bf16_f32 v5, v5, v5"); e("v_lshlrev_b32 v5, 16, v5"); e("v_sqrt_f32 v5, v5"); e("s_nop 0")
    e("v_cvt_pk_bf16_f32 v8, v2, v5")
    e("s_cmp_lg_u32 s3, 7"); e("s_cbranch_scc1 K1_NN2")
    top.lab("K1_NLOOP")
    e(f"v_readfirstlane_b32 s{STAG}, v{VNON}"); e(f"s_cmp_lg_u32 s{STAG}, 0"); e("s_cbranch_scc1 K1_NGOT")
    e("v_mov_b32 v7, 0"); e(f"global_load_dword v{VNON}, v7, s[64:65] sc1"); e("s_waitcnt vmcnt(0)")
    e("s_add_u32 s32, s32, 1"); e(f"s_cmp_lt_u32 s32, {SPIN_MAX}"); e("s_cbranch_scc1 K1_NLOOP")
    top.lab("K1_NGOT")
    e(f"v_mov_b32 v7, {L_NONCE}"); e(f"ds_write_b32 v7, v{VNON}"); e("s_waitcnt lgkmcnt(0)")
    top.lab("K1_NN2")
    top.wait_vm(sq_stage[0])
    e("s_barrier")
    if DIAG: e("s_memtime s[34:35]"); e("s_waitcnt lgkmcnt(0)"); e("s_sub_u32 s100, s34, s98"); e("s_mov_b32 s101, 0")
    e(f"v_mov_b32 v7, {L_NONCE}"); e("ds_read_b32 v6, v7"); e("s_waitcnt lgkmcnt(0)"); e(f"v_readfirstlane_b32 s{STAG}, v6")
    e("s_lshl_b32 s90, s6, 7"); e("s_lshl_b32 s91, s7, 3"); e("s_add_u32 s90, s90, s91"); e("s_add_u32 s90, s90, s3"); e("s_lshl_b32 s90, s90, 3")
    e(f"v_mov_b32 v9, s{STAG}"); e("v_mov_b32 v7, 0")
    e("s_mov_b32 exec_lo, 0"); e("s_brev_b32 exec_hi, 1")
    top.vmem(f"buffer_store_dwordx2 v[8:9], v7, s[24:27], s90 offen offset:{O_ST} sc0 sc1")
    e("s_mov_b64 exec, -1")
    e("s_cmp_lg_u32 s5, 0"); e("s_cbranch_scc1 K1_CH1")
    texts = [top.text()]
    for ch in range(2): texts.append(gen_ch(ch, top, sq_stage, sq_lam))
    tail = Em(); tail.lab("K1_FIN")
    if FUSED:
        from k2f import gen_part2
        gen_part2(tail)
    if DIAG:
        e = tail.e
        e("s_waitcnt vmcnt(0)")
        e("s_memrealtime s[86:87]"); e("s_memtime s[88:89]"); e("s_waitcnt lgkmcnt(0)")
        e("s_cmp_lg_u32 s3, 0"); e("s_cbranch_scc1 K1_END")
        e("v_mov_b32 v20, s96"); e("v_mov_b32 v21, s86"); e("s_sub_u32 s88, s88, s98"); e("v_mov_b32 v22, s88"); e("v_mov_b32 v23, 0")
        if FUSED:
            e("v_mov_b32 v28, s70"); e("v_mov_b32 v29, s71"); e("v_mov_b32 v30, s72"); e("v_mov_b32 v31, s73")
        e("s_lshl_b32 s50, s2, 5"); e(f"s_add_u32 s50, s50, {OFF_TS}"); e("v_mov_b32 v24, s50")
        e("s_mov_b64 exec, 1"); e("global_store_dwordx4 v24, v[20:23], s[66:67]")
        if FUSED: e("global_store_dwordx4 v24, v[28:31], s[66:67] offset:16")
    tail.lab("K1_END"); tail.e("s_endpgm")
    return "".join(texts) + tail.text() + "\n".join(slow_paths) + "\nK1_CODE_END:\n    s_endpgm\n", kd(name, 256), LDS_TOTAL

from k1b_ch import gen_ch
```

```python
import k1b
from k1b import *

def gen_ch(ch, top, sq_stage_in, sq_lam):
    em = Em(); em.vm = top.vm; em.vm_done = top.vm_done; e = em.e
    st = Stream(em)
    sq_stage = dict(sq_stage_in); sq_t4 = {}; sq_t1 = {}
    C = f"C{ch}"
    em.lab(f"K1_CH{ch}")
    base_now = {}
    def set_base(regs, key, base):
        hi = base & ~0x7fff; cur = base_now.get(key, 0)
        if hi != cur:
            for r in regs:
                d = hi - cur
                em.e(f"v_add_u32 v{r}, {d}, v{r}" if d > 0 else f"v_subrev_u32 v{r}, {-d}, v{r}")
            base_now[key] = hi
        return base - hi
    def x_read(kb, s4):
        imm = set_base(range(VXR, VXR+4), "x", X_base(kb))
        return em.lds(f"ds_read_b128 {rng(xf(4*kb+s4),4)}, v{VXR+s4} offset:{imm}")
    def ssm_read(dst, kb, s4, im):
        imm = set_base(range(VBR, VBR+4), "b", S0_base(kb))
        return em.lds(f"ds_read_b128 {rng(dst,4)}, v{VBR+s4} offset:{imm + 4096*im}")
    def t2_read(dst, base, s, j):
        imm = set_base((VT2A, VT2B), "t2", base)
        r = VT2A if j == 0 else VT2B
        em.lds(f"ds_read_b64_tr_b16 {rng(dst,2)}, v{r} offset:{imm + s*1024}")
        return em.lds(f"ds_read_b64_tr_b16 {rng(dst+2,2)}, v{r} offset:{imm + s*1024 + 256}")
    def t1_read(dst, base, s):
        imm = set_base((VT1R,), "t1", base)
        em.lds(f"ds_read_b64_tr_b16 {rng(dst,2)}, v{VT1R} offset:{imm + s*1024}")
        return em.lds(f"ds_read_b64_tr_b16 {rng(dst+2,2)}, v{VT1R} offset:{imm + s*1024 + 256}")
    def t4_read(dst, base, s, n_):
        imm = set_base((VT4A, VT4B), "t4", base)
        r = VT4A if n_ == 0 else VT4B
        em.lds(f"ds_read_b64_tr_b16 {rng(dst,2)}, v{r} offset:{imm + s*2048}")
        return em.lds(f"ds_read_b64_tr_b16 {rng(dst+2,2)}, v{r} offset:{imm + s*2048 + 512}")
    units = []
    for ks in range(32):
        kb, s4 = ks // 4, ks % 4
        bar = f"B{kb}" if (s4 == 0 and kb > 0) else None
        for j in range(2):
            if ch == 0: rd = (lambda d, kb=kb, s4=s4, j=j: ssm_read(d, kb, s4, j)); ori = "xa"
            else: rd = (lambda d, kb=kb, s4=s4, j=j: t2_read(d, A0_base(kb), s4, j)); ori = "wa"
            units.append(dict(p=0, ks=ks, acc=64+16*j, ori=ori, rd=rd, xr=((kb, s4) if j == 0 else None), bar=(bar if j == 0 else None)))
    if ch == 1:
        for ks in range(32):
            kb, s4 = ks // 4, ks % 4
            units.append(dict(p=1, ks=ks, acc=96, ori="wa", rd=(lambda d, kb=kb, s4=s4: t1_read(d, T1_base[kb], s4)), xr=None, bar={0: "B8", 16: "B8a"}.get(ks)))
    else:
        for ks in range(32):
            units.append(dict(p=1, ks=ks, idle=True, xr=None, bar={0: "B8", 16: "B8a"}.get(ks)))
    for sub in range(2):
        for ks in range(32):
            kb, s4 = ks // 4, ks % 4
            acc = (96 + 16*sub) if ch == 0 else (112 if sub == 0 else 64)
            bar = {0: "B9", 20: "B9a", 24: "B9b"}.get(ks) if sub == 0 else None
            units.append(dict(p=2+sub, ks=ks, acc=acc, ori="wa", rd=(lambda d, kb=kb, s4=s4, sub=sub: t4_read(d, T4_base[kb], s4, sub)), xr=None, bar=bar))
    stamp_n = [0]
    def stamp():
        if DIAG and ch == 1:
            e("s_memtime s[34:35]"); e("s_waitcnt lgkmcnt(0)"); em.lg_done = em.lg
            e("s_sub_u32 s34, s34, s98")
            e(f"v_writelane_b32 v19, s34, {stamp_n[0]}"); stamp_n[0] += 1
    stamp0 = stamp
    dq = []
    def dma_items(it):
        kind, i = it
        if ONLYST and kind != "stage":
            if kind == "mini": sq_stage["mini"] = 0
            if kind == "t4": sq_t4[i] = 0
            if kind == "t1": sq_t1[i] = 0
            return []
        if kind == "stage":
            def fx0(): dma(em, 8, VX0, 78, ta(i), 76, X_base(i))
            def fx1(): dma(em, 8, VX1, 78, ta(i), 76, X_base(i) + 1024)
            def fs(): dma_S0(em, i)
            def ft(): sq_stage[i] = dma_T2(em, i, A0_base(i), 80)
            return [fx0, fx1, fs, ft]
        if kind == "mini":
            def fm():
                em.L += mini_dma_lines(C)
                sq_stage["mini"] = em.vm - 1
            return [fm]
        if kind == "t4":
            def f0(): dma(em, 16, VT4, 81, tb(i), 77, T4_base[i])
            def f1():
                em.e(f"s_add_u32 m0, s77, {T4_base[i] + 1024}"); em.e(f"s_add_u32 s84, s84, {8*3584}")
                sq_t4[i] = em.vmem(f"buffer_load_dwordx4 v{VT4}, s[16:19], s84 offen lds")
            return [f0, f1]
        if kind == "p2":
            if PREF != 1: return []
            def f():
                e(f"s_mov_b32 s84, {i*256*3584}")
                em.vmem(f"buffer_load_dword v127, v{VP2}, s[16:19], s84 offen")
            return [f]
        if kind == "t1":
            def f(): sq_t1[i] = dma_T2(em, i, T1_base[i], 82)
            return [f]
    def drain_dq(n=10**9):
        while dq and n > 0:
            dq.pop(0)(); n -= 1
    def barrier(name):
        if FINE:
            def stamp(): pass
        else:
            stamp = stamp0
        drain_dq()
        if NOBAR:
            stamp(); stamp()
            for it in DMA_SCHED.get(name, []): dq.extend(dma_items(it))
            return
        if name == SEG_BAR and ch == 0 and not NOCOMP: st.flush_until("seg_written")
        if name[1:].isdigit() and 1 <= int(name[1:]) <= 7: em.wait_vm(sq_stage[int(name[1:])])
        if name == MINI_AT: em.wait_vm(sq_stage["mini"])
        if name == "B8": em.wait_vm(sq_t1[6])
        if name == "B8a": em.wait_vm(sq_t1[7])
        if name == "B9": em.wait_vm(sq_t4[4])
        if name == "B9a": em.wait_vm(sq_t4[5])
        if name == "B9b": em.wait_vm(sq_t4[7])
        if name == "B9b" and FUSED and ch == 0 and not NOCOMP:
            st.flush_until("pre_p1"); em.wait_vm(holder["sjst"])
        e("s_waitcnt lgkmcnt(0)"); em.lg_done = em.lg
        stamp()
        e("s_barrier")
        stamp()
        st.signal(name)
        if name == "B8" and ch == 0: hstamp(em, 3); em.lg_done = em.lg
        if name == "B9b" and FUSED and ch == 0 and not NOCOMP:
            for l in ["s_cmp_lg_u32 s3, 0", "s_cbranch_scc1 K1_NOWTF",
                      "s_lshl_b32 s90, s6, 4", "s_add_u32 s90, s90, s7", "s_lshl_b32 s90, s90, 4", f"s_add_u32 s90, s90, {O_DN + 8}",
                      f"v_mov_b32 v2, s{STAG}", f"v_mov_b32 v3, s{STAG}", "v_mov_b32 v4, 0", "s_mov_b64 exec, 1",
                      "buffer_store_dwordx2 v[2:3], v4, s[24:27], s90 offen sc0 sc1", "s_mov_b64 exec, -1"]: e(l)
            em.lab("K1_NOWTF")
        if name == GATHER_AT and not NOCOMP:
            for f_ in issue_stats(10) + issue_cs_all(): f_(em)
        for it in DMA_SCHED.get(name, []): dq.extend(dma_items(it))
        if name == MINI_AT and ch == 0 and not NOCOMP:
            for l in mini_compute(base_now.get("t2", 0), base_now.get("b", 0)):
                if l.endswith(":"): em.L.append(l)
                else: e(l)
    e("s_lshl_b32 s68, s6, 2"); e("s_add_u32 s68, s68, s4"); e(f"s_mul_i32 s68, s68, {NKS*1024}")
    e("s_mul_i32 s69, s7, 9"); e("s_lshl_b32 s69, s69, 10"); e(f"s_add_u32 s69, s69, {O_CS}")
    e("s_lshl_b32 s71, s6, 7"); e("s_lshl_b32 s90, s4, 5"); e("s_add_u32 s71, s71, s90"); e("s_lshl_b32 s71, s71, 3")
    holder = {}
    if DIAG and ch == 1:
        em.wait_vm(sq_lam)
        for i_, r_ in enumerate((95, 94, 100, 101)): e(f"v_writelane_b32 v19, s{r_}, {40+i_}")
    stamp()
    def issue_stats(dst):
        def f(em_):
            holder["st"] = tagged_load(em_, [f"v_lshlrev_b32 v{dst}, 3, v{VPI}"],
                [f"buffer_load_dwordx2 {rng(dst,2)}, v{dst}, s[24:27], s71 offen offset:{O_ST} sc1"], [dst+1], f"K1{C}_ST")
        return [f]
    def proc_stats(src):
        return [lambda em_: holder["st"](em_),
                f"v_and_b32 v{VRS}, 0xffff0000, v{src}",
                f"v_mul_f32 v{VI2}, v{VRS}, v{VRS}",
                f"v_rcp_f32 v{VRS}, v{VRS}",
                f"v_and_b32 v{src+1}, 0xffff, v{src}",
                f"v_xor_b32 v{src+1}, 0x8000, v{src+1}",
                f"v_cmp_gt_u32 vcc, 32, v0",
                f"v_lshl_or_b32 v{src}, v{src+1}, 16, v{src+1}",
                f"v_mul_f32 v{VC1}, {NLOG2E}, v{VRS}",
                f"v_cndmask_b32 v{src}, 0, v{src}, vcc",
                f"v_cndmask_b32 v{src+1}, 0, v{src+1}, vcc"]
    def set_xm(src):
        return [f"v_mov_b32 v{VXM}, v{src}", f"v_mov_b32 v{VXM+1}, v{src+1}", f"v_mov_b32 v{VXM+2}, 0", f"v_mov_b32 v{VXM+3}, 0",
                f"v_mov_b32 v{FR+2}, 0", f"v_mov_b32 v{FR+3}, 0"]
    FR = 12
    VCSA = 26 if ch == 1 else 24
    tiles = [0, 1, 4, 5] if ch == 0 else [2, 3, 6, 7, 8]
    GC = {t: 108 + 4*n for n, t in enumerate(tiles)}
    def issue_cs_all():
        out = []
        for t in tiles:
            def f(em_, t=t):
                holder[("cs", t)] = tagged_load(em_, [f"s_add_u32 s90, s69, {t*1024}"],
                    [f"buffer_load_dwordx4 {rng(GC[t],4)}, v{VLANE16}, s[24:27], s90 offen sc1"], [GC[t]+1, GC[t]+3], f"K1{C}_CS{t}")
            out.append(f)
        return out
    def build_csf_all():
        seq = []
        for t in tiles: seq.append(lambda em_, t=t: holder[("cs", t)](em_))
        for t in tiles: g = GC[t]; seq += [f"v_add_f32 v{g}, v{g}, v{g+2}"]
        for t in tiles: g = GC[t]; seq += [f"v_mov_b32 v{g+1}, v{g}"]
        seq.append("s_nop 1")
        for t in tiles: g = GC[t]; seq += [f"v_permlane32_swap_b32 v{g}, v{g+1}"]
        seq.append("s_nop 1")
        for t in tiles: g = GC[t]; seq += [f"v_add_f32 v{g+2}, v{g}, v{g+1}"]
        for t in tiles: g = GC[t]; seq += [f"v_cvt_pk_bf16_f32 v{g+3}, v{g+2}, v{g+2}"]
        for t in tiles: g = GC[t]; seq += [f"v_lshlrev_b32 v{g+3}, 16, v{g+3}"]
        for t in tiles: g = GC[t]; seq += [f"v_sub_f32 v{g+3}, v{g+2}, v{g+3}"]
        for t in tiles: g = GC[t]; seq += [f"v_cvt_pk_bf16_f32 v{g}, v{g+2}, v{g+3}"]
        for t in tiles: g = GC[t]; seq += [f"v_and_b32 v{g+2}, 0xffff0000, v{g}"]
        for t in tiles: g = GC[t]; seq += [f"v_sub_f32 v{g+3}, v{g+3}, v{g+2}"]
        for t in tiles: g = GC[t]; seq += [f"v_cvt_pk_bf16_f32 v{g+1}, v{g+3}, 0"]
        seq += [f"v_lshlrev_b32 v2, 3, v0", f"v_add_u32 v2, {L_CSF + ch*2560}, v2"]
        for n, t in enumerate(tiles):
            seq.append(lambda em_, n=n, t=t: em_.lds(f"ds_write_b64 v2, {rng(GC[t],2)} offset:{512*n}"))
        return seq
    def corr(tile, acc, ori):
        n = tiles.index(tile)
        seq = [f"v_lshlrev_b32 v{FR+1}, 3, v0", f"v_add_u32 v{FR+1}, {L_CSF + ch*2560}, v{FR+1}",
               lambda em_: holder.__setitem__("cf", em_.lds(f"ds_read_b64 {rng(FR,2)}, v{FR+1} offset:{512*n}")),
               lambda em_: em_.wait_lg(holder["cf"])]
        if ori == "wa": seq.append(f"v_mfma_f32_32x32x16_bf16 {rng(acc,16)}, {rng(FR,4)}, {rng(VXM,4)}, {rng(acc,16)}")
        else: seq.append(f"v_mfma_f32_32x32x16_bf16 {rng(acc,16)}, {rng(VXM,4)}, {rng(FR,4)}, {rng(acc,16)}")
        return seq
    def ffn_epi(acc, sreg, jadd, nop=True):
        T = 6; seq = ["s_nop 7", "s_nop 3"] if nop else []
        for i in range(0, 4, 2):
            pass
        for i in range(4):
            g0, g1, u0, u1 = acc+2*i, acc+2*i+1, acc+8+2*i, acc+8+2*i+1
            seq += [f"v_mul_f32 v{T}, v{g0}, v{VC1}", f"v_mul_f32 v{T+1}, v{g1}, v{VC1}",
                    f"v_exp_f32 v{T}, v{T}", f"v_exp_f32 v{T+1}, v{T+1}",
                    f"v_mul_f32 v{T+2}, v{g0}, v{u0}", f"v_mul_f32 v{T+3}, v{g1}, v{u1}",
                    f"v_fma_f32 v{T}, v{T}, v{VI2}, v{VI2}", f"v_fma_f32 v{T+1}, v{T+1}, v{VI2}, v{VI2}",
                    f"v_rcp_f32 v{T}, v{T}", f"v_rcp_f32 v{T+1}, v{T+1}"]
            if i == 3: seq += [f"s_lshl_b32 s90, s{sreg}, 5"]
            else: seq += [f"s_nop 0"]
            seq += [f"v_mul_f32 v{T+2}, v{T+2}, v{T}", f"v_mul_f32 v{T+3}, v{T+3}, v{T+1}",
                    f"v_cvt_pk_bf16_f32 v{2+i}, v{T+2}, v{T+3}"]
        seq += [f"s_add_u32 s90, s90, s68", f"s_add_u32 s90, s90, {(64+jadd)*1024}",
                lambda em_: em_.vmem(f"buffer_store_dwordx4 v[2:5], v{VLANE16}, s[20:23], s90 offen{SC}"),
                "s_nop 0"]
        return seq
    sj_ld, sj_st = side_job(96)
    if ch == 1:
        st.add([("after", PROC_AT)] + proc_stats(10) + build_csf_all() + [("mark", "pre_p1")])
        st.add([("after", "p0done")] + set_xm(10))
        st.add(corr(2, 64, "wa") + corr(3, 80, "wa") + ["s_nop 7"] + ffn_epi(64, 80, 0, False) + [("mark", "acc64_free")])
        st.add(ffn_epi(80, 80, 1, False))
        st.add([("after", "p1done")])
        st.add(corr(8, 96, "wa") + ffn_epi(96, 79, 0))
        st.add([("after", "p2done")])
        st.add(corr(6, 112, "wa") + ffn_epi(112, 81, 2))
        st.add([("after", "p3done")])
        st.add(corr(7, 64, "wa") + ffn_epi(64, 81, 3))
    else:
        LAM, L16, L128, CO2, CC, PW, EE = 56, 58, 60, 62, 32, 34, 25
        RE, IM = 64, 80
        def csq(dst, src, t):
            return [f"v_mul_f32 v{t}, v{src}, v{src}", f"v_mul_f32 v{t+1}, v{src}, v{src+1}",
                    f"v_fma_f32 v{dst}, -v{src+1}, v{src+1}, v{t}", f"v_add_f32 v{dst+1}, v{t+1}, v{t+1}"]
        lam = [lambda em_: em_.wait_vm(sq_lam),
               f"v_lshlrev_b32 v2, 16, v{VLRE}", f"v_lshlrev_b32 v3, 16, v{VLIM}", f"v_lshlrev_b32 v4, 16, v{VLDT}",
               f"v_mul_f32 v4, {LOG2E}, v4", "v_exp_f32 v4, v4", "s_nop 0",
               "v_cvt_pk_bf16_f32 v4, v4, v4", "v_lshlrev_b32 v4, 16, v4",
               "v_mul_f32 v5, v4, v2", "v_mul_f32 v6, v4, v3",
               f"v_mul_f32 v5, {LOG2E}, v5", f"v_mul_f32 v6, {INV2PI}, v6",
               "v_exp_f32 v5, v5", "v_fract_f32 v6, v6", "s_nop 0",
               "v_cos_f32 v7, v6", "v_sin_f32 v8, v6", "s_nop 0",
               f"v_mul_f32 v{LAM}, v5, v7", f"v_mul_f32 v{LAM+1}, v5, v8",
               f"v_subrev_f32 v7, 1.0, v{LAM}",
               "v_mul_f32 v9, v2, v2", "v_fma_f32 v9, v3, v3, v9", "v_rcp_f32 v9, v9",
               "v_mul_f32 v10, v7, v2", f"v_fma_f32 v10, v{LAM+1}, v3, v10",
               f"v_mul_f32 v11, v{LAM+1}, v2", "v_fma_f32 v11, -v7, v3, v11",
               "v_add_f32 v9, v9, v9",
               f"v_mul_f32 v{CO2}, v10, v9", f"v_mul_f32 v{CO2+1}, v11, v9"]
        lam += csq(L16, LAM, 2) + csq(L16, L16, 2) + csq(L16, L16, 2) + csq(L16, L16, 2)
        lam += csq(L128, L16, 2) + csq(L128, L128, 2) + csq(L128, L128, 2)
        PWA, PWB = 1, 18
        lam += csq(2, L16, 4)
        lam += csq(6, 2, 4)
        lam += [f"v_mul_f32 v8, v2, v6", f"v_mul_f32 v9, v2, v7", f"v_fma_f32 v8, -v3, v7, v8", f"v_fma_f32 v9, v3, v6, v9",
                [f"s_cmp_eq_u32 s4, 1", "s_cselect_b64 s[92:93], -1, 0"], "v_mov_b32 v10, 1.0", "v_mov_b32 v11, 0",
                "v_cndmask_b32 v10, v10, v2, s[92:93]", "v_cndmask_b32 v11, v11, v3, s[92:93]",
                [f"s_cmp_eq_u32 s4, 2", "s_cselect_b64 s[92:93], -1, 0"],
                "v_cndmask_b32 v10, v10, v6, s[92:93]", "v_cndmask_b32 v11, v11, v7, s[92:93]",
                [f"s_cmp_eq_u32 s4, 3", "s_cselect_b64 s[92:93], -1, 0"],
                "v_cndmask_b32 v10, v10, v8, s[92:93]", "v_cndmask_b32 v11, v11, v9, s[92:93]",
                f"v_mul_f32 v2, v{L16}, v10", f"v_mul_f32 v3, v{L16}, v11", f"v_fma_f32 v2, -v{L16+1}, v11, v2", f"v_fma_f32 v3, v{L16+1}, v10, v3",
                "v_cmp_lt_u32 vcc, 31, v0", "s_nop 1",
                f"v_cndmask_b32 v{PWA}, v10, v2, vcc", f"v_cndmask_b32 v{PWB}, v11, v3, vcc"]
        st.add([("after", "B3")] + lam)
        st.add([("after", PROC_AT)] + proc_stats(10) + build_csf_all())
        st.add([f"s_lshl_b32 s86, s4, 7", f"s_add_u32 s86, s86, {L_RS}", f"v_lshlrev_b32 v2, 2, v{VPI}", f"v_add_u32 v2, s86, v2",
                lambda em_: em_.lds(f"ds_write_b32 v2, v{VRS}")])
        st.add([("mark", "pre_sj")] + sj_ld)
        st.add([("after", "p0done")] + set_xm(10))
        st.add(corr(0, RE, "xa") + corr(1, IM, "xa"))
        seqs = ["v_lshrrev_b32 v3, 5, v0", "v_lshlrev_b32 v3, 6, v3", f"v_add_u32 v3, s86, v3"]
        for q in range(2):
            seqs.append(lambda em_, q=q: holder.__setitem__(("rs", q), em_.lds(f"ds_read_b128 {rng(4+4*q,4)}, v3 offset:{16*q}")))
        seqs += [lambda em_: em_.wait_lg(holder[("rs", 0)]), "s_nop 7"]
        for q in range(4):
            R = 4 + 4*(q % 2)
            if q >= 1: seqs.append(lambda em_, q=q: em_.wait_lg(holder[("rs", q)]))
            for i in range(4): seqs += [f"v_mul_f32 v{RE+4*q+i}, v{RE+4*q+i}, v{R+i}", f"v_mul_f32 v{IM+4*q+i}, v{IM+4*q+i}, v{R+i}"]
            if q < 2: seqs.append(lambda em_, q=q, R=R: holder.__setitem__(("rs", q+2), em_.lds(f"ds_read_b128 {rng(R,4)}, v3 offset:{16*(q+2)}")))
        st.add(seqs)
        st.add([f"v_fma_f32 v2, v{LAM}, v{RE}, v{RE+1}", f"v_fma_f32 v3, v{LAM}, v{IM}, v{IM+1}",
                f"v_fma_f32 v2, -v{LAM+1}, v{IM}, v2", f"v_fma_f32 v3, v{LAM+1}, v{RE}, v3"])
        cur = 2
        for r in range(2, 16):
            nx = 6 - cur
            st.add([f"v_fma_f32 v{nx}, v{LAM}, v{cur}, v{RE+r}", f"v_fma_f32 v{nx+1}, v{LAM}, v{cur+1}, v{IM+r}",
                    f"v_fma_f32 v{nx}, -v{LAM+1}, v{cur+1}, v{nx}", f"v_fma_f32 v{nx+1}, v{LAM+1}, v{cur}, v{nx+1}"])
            cur = nx
        st.add([f"s_lshl_b32 s90, s4, 9", f"s_add_u32 s90, s90, {L_SEG}", "v_lshlrev_b32 v6, 3, v0", "v_add_u32 v6, s90, v6",
                lambda em_, cur=cur: em_.lds(f"ds_write_b64 v6, {rng(cur,2)}"),
                ("mark", "seg_written"), ("after", SEG_BAR)])
        SG = 116
        def rd_seg(em_):
            for s_ in range(6): holder["seg"] = em_.lds(f"ds_read_b64 {rng(SG+2*s_,2)}, v6 offset:{256*s_}")
        blk = []
        ec, en = CC, 2
        blk += [f"v_mov_b32 v{CC}, 0", f"v_mov_b32 v{CC+1}, 0"]
        for s_ in range(6):
            if s_ % 2 == 0: blk += [f"s_cmp_le_u32 s4, {s_//2}", f"s_cbranch_scc1 K1{C}_SGD"]
            blk += [f"v_fma_f32 v2, v{L16}, v{CC}, v{SG+2*s_}", f"v_fma_f32 v3, v{L16}, v{CC+1}, v{SG+1+2*s_}",
                    f"v_fma_f32 v2, -v{L16+1}, v{CC+1}, v2", f"v_fma_f32 v{CC+1}, v{L16+1}, v{CC}, v3", f"v_mov_b32 v{CC}, v2"]
        blk.append(lambda em_: em_.lab(f"K1{C}_SGD"))
        st.add(["v_and_b32 v6, 31, v0", "v_lshlrev_b32 v6, 3, v6", f"v_add_u32 v6, {L_SEG}, v6", rd_seg,
                "s_lshl_b32 s90, s4, 9", "v_add_u32 v7, s90, v6",
                lambda em_: em_.lds(f"ds_read_b64 v[8:9], v7"), lambda em_: holder.__setitem__("e2", em_.lds(f"ds_read_b64 v[10:11], v7 offset:256")),
                lambda em_: em_.wait_lg(holder["e2"]), blk,
                f"v_fma_f32 v2, v{L16}, v{CC}, v8", f"v_fma_f32 v3, v{L16}, v{CC+1}, v9",
                f"v_fma_f32 v2, -v{L16+1}, v{CC+1}, v2", f"v_fma_f32 v3, v{L16+1}, v{CC}, v3",
                f"v_fma_f32 v4, v{L16}, v2, v10", f"v_fma_f32 v6, v{L16}, v3, v11",
                f"v_fma_f32 v4, -v{L16+1}, v3, v4", f"v_fma_f32 v6, v{L16+1}, v2, v6",
                "v_cmp_lt_u32 vcc, 31, v0", f"v_mov_b32 v5, s{STAG}", f"v_mov_b32 v7, s{STAG}",
                f"v_cndmask_b32 v{CC}, v{CC}, v2, vcc", f"v_cndmask_b32 v{CC+1}, v{CC+1}, v3, vcc",
                "s_lshl_b32 s90, s7, 4", "s_add_u32 s90, s90, s6", "s_lshl_b32 s90, s90, 9", f"s_add_u32 s90, s90, {O_E}",
                ["s_cmp_eq_u32 s4, 3", "s_cselect_b32 exec_lo, -1, 0", "s_mov_b32 exec_hi, 0",
                 f"s_cbranch_execz K1{C}_NOPUB",
                 f"buffer_store_dwordx4 v[4:7], v{VLANE16}, s[24:27], s90 offen sc0 sc1",
                 lambda em_: em_.lab(f"K1{C}_NOPUB"),
                 "s_mov_b64 exec, -1", "s_nop 1"]])
        EG = xf(8); HH = xf(6)
        st.add(sj_st + [lambda em_: holder.__setitem__("sjst", em_.vm - 1)])
        st.add([("mark", "sg_free"), ("mark", "pre_p1"), ("after", "p2done")])
        st.add(corr(4, 96, "wa") + ffn_epi(96, 81, 0))
        st.add([("after", "p3s24")])
        def issue_E(em_):
            holder["E"] = [em_.vmem(f"buffer_load_dwordx4 {rng(EG+4*j,4)}, v2, s[24:27], s{90 + (j//8)} offen offset:{512*(j%8)} sc1") for j in range(16)]
        epre = ["s_lshl_b32 s90, s7, 13", f"s_add_u32 s90, s90, {O_E}", "s_add_u32 s91, s90, 4096", "v_and_b32 v2, 31, v0", "v_lshlrev_b32 v2, 4, v2"]
        st.add(epre + [issue_E])
        st.add([("after", "p3done")])
        st.add(corr(5, 112, "wa") + ffn_epi(112, 81, 1))
        def tagchk():
            L = ["v_mov_b32 v3, 0"]
            for j in range(15):
                L += [f"s_cmp_le_u32 s6, {j}", f"s_cbranch_scc1 K1{C}_TCD@", f"v_xor_b32 v4, s{STAG}, v{EG+4*j+1}", f"v_xor_b32 v5, s{STAG}, v{EG+4*j+3}", "v_or3_b32 v3, v3, v4, v5"]
            L += [f"K1{C}_TCD@:", "v_cmp_ne_u32 vcc, 0, v3"]
            return L
        def echeck(em_):
            em_.wait_vm(holder["E"][-1])
            if NOTAG: return
            for l in tagchk():
                l = l.replace("@", "F")
                if l.endswith(":"): em_.L.append(l)
                else: em_.e(l)
            em_.e(f"s_cbranch_vccnz K1{C}_E_SLOW"); em_.lab(f"K1{C}_E_OK")
            sp = [f"K1{C}_E_SLOW:", "    s_sleep 1"] + ["    " + x for x in epre]
            sp += [f"    buffer_load_dwordx4 {rng(EG+4*j,4)}, v2, s[24:27], s{90 + (j//8)} offen offset:{512*(j%8)} sc1" for j in range(16)]
            sp.append("    s_waitcnt vmcnt(0)")
            sp += [(x.replace("@", "S") if x.endswith(":") else "    " + x.replace("@", "S")) for x in tagchk()]
            sp += [f"    s_cbranch_vccz K1{C}_E_OK", "    s_add_u32 s32, s32, 1", f"    s_cmp_lt_u32 s32, {SPIN_MAX}", f"    s_cbranch_scc1 K1{C}_E_SLOW", f"    s_branch K1{C}_E_OK"]
            slow_paths.append("\n".join(sp))
        hb = [f"v_mov_b32 v{HH}, 0", f"v_mov_b32 v{HH+1}, 0"]
        for j in range(15):
            R = EG + 4*j
            hb += [f"s_cmp_le_u32 s6, {j}", f"s_cbranch_scc1 K1{C}_HD",
                   f"v_fma_f32 v2, v{L128}, v{HH}, v{R}", f"v_fma_f32 v3, v{L128}, v{HH+1}, v{R+2}",
                   f"v_fma_f32 v2, -v{L128+1}, v{HH+1}, v2", f"v_fma_f32 v{HH+1}, v{L128+1}, v{HH}, v3", f"v_mov_b32 v{HH}, v2"]
        hb.append(lambda em_: em_.lab(f"K1{C}_HD"))
        st.add([[echeck], hb])
        st.add([f"v_fma_f32 v{CC}, v{PWA}, v{HH}, v{CC}", f"v_fma_f32 v{CC+1}, v{PWA}, v{HH+1}, v{CC+1}",
                f"v_fma_f32 v{CC}, -v{PWB}, v{HH+1}, v{CC}", f"v_fma_f32 v{CC+1}, v{PWB}, v{HH}, v{CC+1}"])
        st.add([("after", "B9"), f"s_mul_i32 s90, s4, 4608", f"s_add_u32 s90, s90, {HT_A}", ["s_cmp_eq_u32 s4, 3", f"s_cselect_b32 s90, {HT_B}, s90"], "v_lshrrev_b32 v6, 5, v0", "v_mul_u32_u24 v6, 2304, v6",
                "v_and_b32 v7, 31, v0", "v_lshl_add_u32 v6, v7, 2, v6", "v_add_u32 v6, s90, v6"])
        cur = CC
        for r in range(16):
            nx = 2 if cur != 2 else 4
            st.add([f"v_fma_f32 v{nx}, v{LAM}, v{cur}, v{RE+r}", f"v_fma_f32 v{nx+1}, v{LAM}, v{cur+1}, v{IM+r}",
                    f"v_fma_f32 v{nx}, -v{LAM+1}, v{cur+1}, v{nx}", f"v_fma_f32 v{nx+1}, v{LAM+1}, v{cur}, v{nx+1}",
                    f"v_mul_f32 v8, v{CO2}, v{nx}", f"v_mul_f32 v9, v{CO2}, v{nx+1}",
                    f"v_fma_f32 v8, -v{CO2+1}, v{nx+1}, v8", f"v_fma_f32 v9, v{CO2+1}, v{nx}, v9",
                    f"v_cvt_pk_bf16_f32 v8, v8, -v9",
                    lambda em_, r=r: em_.lds(f"ds_write_b32 v6, v8 offset:{144*r}")])
            cur = nx
        def rd_ht(em_):
            em_.e("s_waitcnt lgkmcnt(0)"); em_.lg_done = em_.lg
            for s_ in range(4): holder["ht"] = em_.lds(f"ds_read_b128 {rng(XF+4*s_,4)}, v6 offset:{32*s_}")
        st.add([f"v_mul_u32_u24 v6, 144, v{VPI}", "v_lshrrev_b32 v7, 5, v0", "v_lshl_add_u32 v6, v7, 4, v6", "v_add_u32 v6, s90, v6", rd_ht,
                lambda em_: em_.wait_lg(holder["ht"]),
                "s_lshl_b32 s90, s7, 12", "s_add_u32 s90, s90, s68"])
        for s_ in range(4):
            st.add([lambda em_, s_=s_: em_.vmem(f"buffer_store_dwordx4 {rng(XF+4*s_,4)}, v{VLANE16}, s[20:23], s90 offen offset:{1024*s_}{SC}")])
    for it in DMA_SCHED["B0"]: dq.extend(dma_items(it))
    NU = len(units)
    rd_seq = {}; done_bar = set(); slot_of = {}
    NR = 4 if ch == 0 else 6
    slot_ctr = [0]
    def issue_reads(i):
        u = units[i]
        if u["bar"] and u["bar"] not in done_bar:
            barrier(u["bar"]); done_bar.add(u["bar"])
        slot_of[i] = slot_ctr[0] % NR
        if not (NOCOMP or u.get("idle")): slot_ctr[0] += 1
        if NOCOMP or u.get("idle"): rd_seq[i] = -1; slot_of[i] = -1; return
        if u["xr"]: x_read(*u["xr"])
        rd_seq[i] = u["rd"](WR + 4*slot_of[i])
    nxt = 0
    for i in range(NU):
        u = units[i]
        while nxt < NU and nxt <= i + NR - 1:
            issue_reads(nxt); nxt += 1
        if NOCOMP:
            drain_dq(DQ_RATE); continue
        if u.get("idle"):
            drain_dq(DQ_RATE); st.fill(NFI)
            if i + 1 < NU and units[i+1]["p"] != u["p"]: st.signal("p1done")
            continue
        j = i + 1 if (i + 1 < NU and units[i+1]["ks"] == u["ks"] and units[i+1]["p"] == u["p"] and (i+1) in rd_seq) else i
        em.wait_lg(rd_seq[j])
        first = (u["ks"] == 0)
        if first and u["p"] == (1 if ch == 1 else 2): st.flush_until("pre_p1")
        if first and u["p"] == 3 and ch == 1: st.flush_until("acc64_free")
        if first and u["p"] == 3 and ch == 0: st.flush_until("sg_free")
        c = "0" if first else rng(u["acc"], 16)
        w = rng(WR + 4*slot_of[i], 4); x = rng(xf(u["ks"]), 4)
        if u["ori"] == "wa": e(f"v_mfma_f32_32x32x16_bf16 {rng(u['acc'],16)}, {w}, {x}, {c}")
        else: e(f"v_mfma_f32_32x32x16_bf16 {rng(u['acc'],16)}, {x}, {w}, {c}")
        last_of_pass = (i + 1 == NU) or units[i+1]["p"] != u["p"]
        if last_of_pass: st.signal(f"p{u['p']}done")
        last_of_step = (i + 1 == NU) or units[i+1]["ks"] != u["ks"] or last_of_pass
        if last_of_step: st.signal(f"p{u['p']}s{u['ks']}")
        drain_dq(DQ_RATE)
        st.fill(NF[ch])
        if FINE and u["p"] >= 1 and u["ks"] % 8 == 7 and last_of_step: stamp()
    stamp()
    if not NOCOMP: st.flush()
    stamp()
    if DIAG and ch == 1:
        e("s_cmp_lg_u32 s3, 4"); e("s_cbranch_scc1 K1_FIN")
        e("s_lshl_b32 s50, s2, 8"); e(f"s_add_u32 s50, s50, {OFF_TS + 65536}"); e("v_lshlrev_b32 v20, 2, v0"); e("v_add_u32 v20, s50, v20")
        e("global_store_dword v20, v19, s[66:67]")
    e("s_branch K1_FIN")
    return em.text()
```

```python
from common import *
import os
def gen_k2(name="k2_kernel", DEPTH=8):
    em = Em(); e = em.e
    NW = 4; KSW = NKS // NW
    L = em.L
    L.append(f".globl {name}\n.p2align 8\n.type {name},@function\n{name}:")
    e("s_cmp_ge_u32 s2, 256")
    e("s_cbranch_scc1 K2_END")
    if DIAG: e("s_memrealtime s[60:61]"); e("s_memtime s[64:65]")
    e("s_load_dwordx2 s[32:33], s[0:1], %d" % KA['ws'])
    e("s_load_dwordx2 s[34:35], s[0:1], %d" % KA['x'])
    e("s_load_dwordx2 s[36:37], s[0:1], %d" % KA['out'])
    e("s_load_dwordx2 s[38:39], s[0:1], %d" % KA['dsk'])
    e("v_lshrrev_b32 v1, 6, v0")
    e("v_and_b32 v0, 63, v0")
    e("v_lshlrev_b32 v2, 4, v0")
    e("v_readfirstlane_b32 s3, v1")
    e("s_and_b32 s4, s2, 7")
    e("s_lshr_b32 s5, s2, 3")
    e("s_lshr_b32 s6, s4, 1")
    e("s_and_b32 s7, s4, 1")
    e("s_lshl_b32 s6, s6, 3")
    e("s_lshr_b32 s40, s5, 2")
    e("s_add_u32 s6, s6, s40")
    e("s_lshl_b32 s7, s7, 2")
    e("s_and_b32 s40, s5, 3")
    e("s_add_u32 s7, s7, s40")
    import os
    if os.environ.get("K2SAME") == "1":
        e("s_mov_b32 s6, 0"); e("s_mov_b32 s7, 0")
    if os.environ.get("K2SAME") == "2":
        e("s_mov_b32 s6, s4"); e("s_mov_b32 s7, s4")
    e(f"s_mul_i32 s41, s3, {KSW*1024}")
    e(f"s_mul_i32 s42, s6, {2*NKS*1024}")
    e("s_add_u32 s42, s42, s41")
    e(f"s_add_u32 s43, s42, {NKS*1024}")
    e(f"s_mul_i32 s44, s7, {2*NKS*1024}")
    e("s_add_u32 s44, s44, s41")
    e(f"s_add_u32 s45, s44, {NKS*1024}")
    e("s_waitcnt lgkmcnt(0)")
    srd(em, 8, 32, 33, SZ_ACT, OFF_ACT)
    srd(em, 12, 32, 33, SZ_WT, OFF_WT)
    srd(em, 16, 34, 35, NROW*D*2)
    srd(em, 20, 36, 37, NROW*D*4)
    srd(em, 24, 32, 33, SZ_ST, OFF_ST)
    srd(em, 28, 38, 39, D*2)
    if DIAG: e("s_memtime s[68:69]"); e("s_waitcnt lgkmcnt(0)"); e("s_sub_u32 s70, s68, s64")
    ACC = 16
    FR = 80
    def acc(a,b): return ACC + (2*a+b)*16
    def rng(r,n): return f"v[{r}:{r+n-1}]"
    seqs = {}
    def issue(ks):
        slot = ks % DEPTH
        if ks % 4 == 0 and ks > 0:
            for s in (42,43,44,45): e(f"s_add_u32 s{s}, s{s}, 4096")
        o = (ks % 4)*1024
        r = FR + slot*16
        em.vmem(f"buffer_load_dwordx4 {rng(r,4)}, v2, s[12:15], s44 offen offset:{o}")
        em.vmem(f"buffer_load_dwordx4 {rng(r+8,4)}, v2, s[8:11], s42 offen offset:{o}")
        em.vmem(f"buffer_load_dwordx4 {rng(r+4,4)}, v2, s[12:15], s45 offen offset:{o}")
        seqs[ks] = em.vmem(f"buffer_load_dwordx4 {rng(r+12,4)}, v2, s[8:11], s43 offen offset:{o}")
    for ks in range(min(DEPTH, KSW)): issue(ks)
    EP = FR + DEPTH*16
    e("v_and_b32 v3, 31, v0")
    e("v_lshrrev_b32 v4, 5, v0")
    e("v_bfe_u32 v5, v3, 2, 1")
    e("v_lshlrev_b32 v5, 4, v5")
    e("v_lshrrev_b32 v6, 3, v3")
    e("v_lshl_add_u32 v5, v6, 2, v5")
    e("v_and_b32 v6, 3, v3")
    e("v_add_u32 v5, v5, v6")
    e("s_and_b32 s46, s3, 1")
    e("s_lshr_b32 s47, s3, 1")
    e("s_lshl_b32 s48, s6, 6")
    e("s_lshl_b32 s46, s46, 5")
    e("s_add_u32 s48, s48, s46")
    e("v_add_u32 v5, s48, v5")
    e("s_lshl_b32 s49, s7, 6")
    e("s_lshl_b32 s47, s47, 5")
    e("s_add_u32 s49, s49, s47")
    e("v_lshlrev_b32 v6, 2, v4")
    e("v_add_u32 v6, s49, v6")
    e("v_lshlrev_b32 v7, 3, v5")
    e("v_lshlrev_b32 v8, 10, v5")
    e("v_lshl_add_u32 v8, v6, 1, v8")
    e("v_lshlrev_b32 v9, 1, v6")
    e("v_lshlrev_b32 v10, 11, v5")
    e("v_lshl_add_u32 v10, v6, 2, v10")
    XS = EP; DS = EP+8; ST = EP+16
    sq_st = em.vmem(f"buffer_load_dwordx2 {rng(ST,2)}, v7, s[24:27], 0 offen")
    for q in range(4):
        em.vmem(f"buffer_load_dwordx2 {rng(XS+2*q,2)}, v8, s[16:19], 0 offen offset:{16*q}")
    for q in range(4):
        sq_ep = em.vmem(f"buffer_load_dwordx2 {rng(DS+2*q,2)}, v9, s[28:31], 0 offen offset:{16*q}")
    first = True
    for ks in range(KSW):
        em.wait_vm(seqs[ks])
        if ks == 0 and DIAG: e("s_memtime s[68:69]"); e("s_waitcnt lgkmcnt(0)"); e("s_sub_u32 s71, s68, s64")
        r = FR + (ks % DEPTH)*16
        for a in range(2):
            for b in range(2):
                c = "0" if ks == 0 else rng(acc(a,b),16)
                e(f"v_mfma_f32_32x32x16_bf16 {rng(acc(a,b),16)}, {rng(r+4*a,4)}, {rng(r+8+4*b,4)}, {c}")
        if ks + DEPTH < KSW: issue(ks + DEPTH)
    if DIAG: e("s_memtime s[68:69]"); e("s_waitcnt lgkmcnt(0)"); e("s_sub_u32 s72, s68, s64")
    e("s_nop 15");
    e("s_lshl_b32 s50, s3, 12")
    e("v_add_u32 v11, s50, v2")
    for q in range(4):
        for r4 in range(4):
            em.lds(f"ds_write_b128 v11, {rng(ACC+q*16+r4*4,4)} offset:{q*16384 + r4*1024}")
    e("s_waitcnt lgkmcnt(0)"); em.lg_done = em.lg
    e("s_barrier")
    e("s_lshl_b32 s50, s3, 14")
    e("v_add_u32 v11, s50, v2")
    RD = FR
    for w in range(4):
        for r4 in range(4):
            em.lds(f"ds_read_b128 {rng(RD+w*16+r4*4,4)}, v11 offset:{w*4096 + r4*1024}")
    em.wait_vm(sq_ep)
    T = EP + 20
    e(f"v_lshlrev_b32 v12, 16, v{ST}")
    e(f"v_and_b32 v13, 0xffff0000, v{ST}")
    e("v_rcp_f32 v13, v13")
    RES = ACC
    for q in range(4):
        for d2 in range(2):
            xr = XS + 2*q + d2; dr = DS + 2*q + d2
            e(f"v_lshlrev_b32 v{T}, 16, v{xr}")
            e(f"v_and_b32 v{T+1}, 0xffff0000, v{xr}")
            e(f"v_sub_f32 v{T+2}, v{T}, v12")
            e(f"v_sub_f32 v{T+3}, v{T+1}, v12")
            e(f"v_cvt_pk_bf16_f32 v{T+2}, v{T+2}, v{T+3}")
            e(f"v_lshlrev_b32 v{T+3}, 16, v{T+2}")
            e(f"v_and_b32 v{T+2}, 0xffff0000, v{T+2}")
            e(f"v_mul_f32 v{T+3}, v{T+3}, v13")
            e(f"v_mul_f32 v{T+2}, v{T+2}, v13")
            e(f"v_cvt_pk_bf16_f32 v{T+2}, v{T+3}, v{T+2}")
            e(f"v_lshlrev_b32 v{T+3}, 16, v{T+2}")
            e(f"v_and_b32 v{T+2}, 0xffff0000, v{T+2}")
            e(f"v_lshlrev_b32 v{T+4}, 16, v{dr}")
            e(f"v_and_b32 v{T+5}, 0xffff0000, v{dr}")
            e(f"v_mul_f32 v{T+3}, v{T+3}, v{T+4}")
            e(f"v_mul_f32 v{T+2}, v{T+2}, v{T+5}")
            e(f"v_cvt_pk_bf16_f32 v{T+2}, v{T+3}, v{T+2}")
            e(f"v_lshlrev_b32 v{T+3}, 16, v{T+2}")
            e(f"v_and_b32 v{T+2}, 0xffff0000, v{T+2}")
            e(f"v_add_f32 v{RES+4*q+2*d2}, v{T+3}, v{T}")
            e(f"v_add_f32 v{RES+4*q+2*d2+1}, v{T+2}, v{T+1}")
    e("s_waitcnt lgkmcnt(0)"); em.lg_done = em.lg
    for i in range(16):
        e(f"v_add_f32 v{RD+i}, v{RD+i}, v{RD+16+i}")
        e(f"v_add_f32 v{RD+32+i}, v{RD+32+i}, v{RD+48+i}")
    for i in range(16):
        e(f"v_add_f32 v{RD+i}, v{RD+i}, v{RD+32+i}")
    for i in range(16):
        e(f"v_add_f32 v{RD+i}, v{RD+i}, v{RES+i}")
    if DIAG: e("s_memtime s[68:69]"); e("s_waitcnt lgkmcnt(0)"); e("s_sub_u32 s73, s68, s64")
    if os.environ.get("PERTURB"):
        for i in range(16): e(f"v_mul_f32 v{RD+i}, {os.environ['PERTURB']}, v{RD+i}")
    for q in range(4):
        em.vmem(f"buffer_store_dwordx4 {rng(RD+4*q,4)}, v10, s[20:23], 0 offen offset:{32*q}")
    if DIAG:
        e("s_waitcnt vmcnt(0)")
        e("s_memrealtime s[62:63]"); e("s_memtime s[66:67]")
        e("s_waitcnt lgkmcnt(0)")
        e("s_cmp_lg_u32 s3, 0")
        e("s_cbranch_scc1 K2_END")
        e("v_mov_b32 v20, s60"); e("v_mov_b32 v21, s62"); e("s_sub_u32 s66, s66, s64"); e("v_mov_b32 v22, s66"); e("v_mov_b32 v23, 0"); e("v_mov_b32 v28, s70"); e("v_mov_b32 v29, s71"); e("v_mov_b32 v30, s72"); e("v_mov_b32 v31, s73")
        e("s_lshl_b32 s50, s2, 5")
        e(f"s_add_u32 s50, s50, {OFF_TS + 8192}")
        e("v_mov_b32 v24, s50")
        e("s_mov_b64 exec, 1")
        e("global_store_dwordx4 v24, v[20:23], s[32:33]"); e("global_store_dwordx4 v24, v[28:31], s[32:33] offset:16")
    em.lab("K2_END")
    e("s_endpgm")
    nv = T + 8
    return em.text(), kd(name, nv), 65536
```

```python
from common import *
import os
import k1b
from k1b import STAG, O_ST, O_DN, SPIN_MAX, slow_paths
O_DW = O_DN + 4
def gen_part2(em, NW=8):
    NP = int(os.environ.get("K2NP", "14")); DA = int(os.environ.get("K2DA", "5"))
    e = em.e
    KSW = NKS // NW
    def rng(r,n): return f"v[{r}:{r+n-1}]"
    def dstamp(n):
        if DIAG: e("s_memtime s[34:35]"); e("s_waitcnt lgkmcnt(0)"); e(f"s_sub_u32 s{n}, s34, s98")
    em.vm = 0; em.vm_done = 0; em.lg = 0; em.lg_done = 0
    e("s_load_dwordx2 s[36:37], s[0:1], %d" % KA['dsk'])
    e(f"s_mov_b32 s74, s{STAG}")
    e("s_and_b32 s4, s2, 7"); e("s_lshr_b32 s5, s2, 3"); e("s_lshr_b32 s38, s4, 1"); e("s_and_b32 s39, s4, 1")
    e("s_lshl_b32 s38, s38, 3"); e("s_lshr_b32 s40, s5, 2"); e("s_add_u32 s38, s38, s40")
    e("s_lshl_b32 s39, s39, 2"); e("s_and_b32 s40, s5, 3"); e("s_add_u32 s39, s39, s40")
    e("v_and_b32 v2, 31, v0"); e("s_lshl_b32 s41, s39, 5"); e("v_add_u32 v2, s41, v2"); e("v_lshlrev_b32 v2, 4, v2")
    e(f"s_mov_b32 s45, {O_DN + 8}")
    em.lab("P2_WPOLL")
    e("buffer_load_dword v3, v2, s[24:27], s45 offen sc1")
    e("s_waitcnt vmcnt(0)")
    e("v_cmp_ne_u32 vcc, s74, v3")
    e("s_cbranch_vccz P2_WGO")
    e("s_add_u32 s32, s32, 1"); e(f"s_cmp_lt_u32 s32, {SPIN_MAX}"); e("s_cbranch_scc1 P2_WPOLL")
    em.lab("P2_WGO")
    e("s_waitcnt lgkmcnt(0)")
    srd(em, 12, 66, 67, SZ_WT, OFF_WT); srd(em, 28, 36, 37, D*2); srd(em, 16, 62, 63, NROW*D*4)
    e("v_lshlrev_b32 v2, 4, v0")
    e(f"s_mul_i32 s41, s3, {KSW*1024}"); e(f"s_mul_i32 s42, s38, {2*NKS*1024}"); e("s_add_u32 s42, s42, s41"); e(f"s_add_u32 s43, s42, {NKS*1024}")
    e(f"s_mul_i32 s44, s39, {2*NKS*1024}"); e("s_add_u32 s44, s44, s41"); e(f"s_add_u32 s45, s44, {NKS*1024}")
    ACC = 16; WP = 80; AR = WP + NP*8; EP = AR + DA*8
    def acc(a,b): return ACC + (2*a+b)*16
    wseq = {}; aseq = {}
    def soff(base, ks, tmp):
        hi = (ks // 4) * 4096
        if hi == 0: return base, (ks % 4)*1024
        e(f"s_add_u32 s{tmp}, s{base}, {hi}")
        return tmp, (ks % 4)*1024
    def issue_w(ks):
        r = WP + (ks % NP)*8
        s0, o = soff(44, ks, 46); em.vmem(f"buffer_load_dwordx4 {rng(r,4)}, v2, s[12:15], s{s0} offen offset:{o} sc1")
        s1, o = soff(45, ks, 47); wseq[ks] = em.vmem(f"buffer_load_dwordx4 {rng(r+4,4)}, v2, s[12:15], s{s1} offen offset:{o} sc1")
    def issue_a(ks):
        r = AR + (ks % DA)*8
        s0, o = soff(42, ks, 46); em.vmem(f"buffer_load_dwordx4 {rng(r,4)}, v2, s[20:23], s{s0} offen offset:{o} sc1")
        s1, o = soff(43, ks, 47); aseq[ks] = em.vmem(f"buffer_load_dwordx4 {rng(r+4,4)}, v2, s[20:23], s{s1} offen offset:{o} sc1")
    e("s_barrier")
    dstamp(70)
    e("s_cmp_lg_u32 s3, 0"); e("s_cbranch_scc1 P2_NOPOLL")
    e("s_lshl_b32 s40, s6, 4"); e("s_add_u32 s40, s40, s7"); e("s_lshl_b32 s40, s40, 4"); e(f"s_add_u32 s40, s40, {O_DN}")
    e("v_mov_b32 v12, s74"); e("v_mov_b32 v13, s74"); e("v_mov_b32 v14, 0")
    e("s_mov_b64 exec, 1")
    e("buffer_store_dwordx2 v[12:13], v14, s[24:27], s40 offen sc0 sc1")
    e("s_mov_b64 exec, -1")
    e("s_lshr_b32 s40, s38, 1"); e("s_lshl_b32 s40, s40, 4")
    e("v_and_b32 v12, 15, v0"); e("v_add_u32 v12, s40, v12"); e("v_lshlrev_b32 v12, 4, v12")
    e(f"s_mov_b32 s40, {O_DN}")
    em.lab("P2_POLL")
    e("buffer_load_dword v13, v12, s[24:27], s40 offen sc1")
    e("s_waitcnt vmcnt(0)")
    e("v_cmp_ne_u32 vcc, s74, v13")
    e("s_cbranch_vccz P2_GOT")
    e("s_add_u32 s32, s32, 1"); e(f"s_cmp_lt_u32 s32, {SPIN_MAX}"); e("s_cbranch_scc1 P2_POLL")
    em.lab("P2_GOT")
    e("s_barrier")
    e("s_branch P2_W0")
    em.lab("P2_NOPOLL")
    tmpL = len(em.L); vm0 = em.vm
    for ks in range(min(NP, KSW)): issue_w(ks)
    pref_code = em.L[tmpL:]
    e("s_barrier")
    e("s_branch P2_JOIN")
    em.lab("P2_W0")
    em.L += pref_code
    em.lab("P2_JOIN")
    NREG = 64 // NW; NQ4 = NREG // 4
    e("v_and_b32 v3, 31, v0"); e("v_lshrrev_b32 v4, 5, v0")
    e("v_bfe_u32 v5, v3, 2, 1"); e("v_lshlrev_b32 v5, 4, v5"); e("v_lshrrev_b32 v6, 3, v3"); e("v_lshl_add_u32 v5, v6, 2, v5")
    e("v_and_b32 v6, 3, v3"); e("v_add_u32 v5, v5, v6")
    e("s_lshr_b32 s51, s3, 1"); e("s_and_b32 s46, s51, 1"); e("s_lshr_b32 s47, s51, 1")
    e("s_lshl_b32 s48, s38, 6"); e("s_lshl_b32 s46, s46, 5"); e("s_add_u32 s48, s48, s46"); e("v_add_u32 v5, s48, v5")
    e("s_lshl_b32 s49, s39, 6"); e("s_lshl_b32 s47, s47, 5"); e("s_add_u32 s49, s49, s47")
    e("s_and_b32 s52, s3, 1"); e("s_lshl_b32 s52, s52, 4"); e("s_add_u32 s49, s49, s52")
    e("v_lshlrev_b32 v6, 2, v4"); e("v_add_u32 v6, s49, v6")
    e("v_lshlrev_b32 v7, 3, v5"); e("v_lshlrev_b32 v8, 10, v5"); e("v_lshl_add_u32 v8, v6, 1, v8"); e("v_lshlrev_b32 v9, 1, v6")
    e("v_lshlrev_b32 v10, 11, v5"); e("v_lshl_add_u32 v10, v6, 2, v10")
    XS = EP; DS = EP+4; ST = EP+8; T = EP + 10; RES = EP + 16
    assert RES + 8 <= 256, RES
    for q in range(NQ4): em.vmem(f"buffer_load_dwordx2 {rng(XS+2*q,2)}, v8, s[8:11], 0 offen offset:{16*q}")
    for q in range(NQ4): em.vmem(f"buffer_load_dwordx2 {rng(DS+2*q,2)}, v9, s[28:31], 0 offen offset:{16*q}")
    dstamp(71)
    for ks in range(min(DA, KSW)): issue_a(ks)
    sq_ep = em.vmem(f"buffer_load_dwordx2 {rng(ST,2)}, v7, s[24:27], 0 offen offset:{O_ST} sc1")
    rq = [lambda: em.wait_vm(sq_ep), f"v_lshlrev_b32 v12, 16, v{ST}", f"v_and_b32 v13, 0xffff0000, v{ST}", "v_rcp_f32 v13, v13", "s_nop 0"]
    for q in range(NQ4):
        for d2 in range(2):
            xr = XS + 2*q + d2; dr = DS + 2*q + d2
            rq += [f"v_lshlrev_b32 v{T}, 16, v{xr}", f"v_and_b32 v{T+1}, 0xffff0000, v{xr}",
                f"v_sub_f32 v{T+2}, v{T}, v12", f"v_sub_f32 v{T+3}, v{T+1}, v12",
                f"v_cvt_pk_bf16_f32 v{T+2}, v{T+2}, v{T+3}", f"v_lshlrev_b32 v{T+3}, 16, v{T+2}", f"v_and_b32 v{T+2}, 0xffff0000, v{T+2}",
                f"v_mul_f32 v{T+3}, v{T+3}, v13", f"v_mul_f32 v{T+2}, v{T+2}, v13",
                f"v_cvt_pk_bf16_f32 v{T+2}, v{T+3}, v{T+2}", f"v_lshlrev_b32 v{T+3}, 16, v{T+2}", f"v_and_b32 v{T+2}, 0xffff0000, v{T+2}",
                f"v_lshlrev_b32 v{T+4}, 16, v{dr}", f"v_and_b32 v{T+5}, 0xffff0000, v{dr}",
                f"v_mul_f32 v{T+3}, v{T+3}, v{T+4}", f"v_mul_f32 v{T+2}, v{T+2}, v{T+5}",
                f"v_cvt_pk_bf16_f32 v{T+2}, v{T+3}, v{T+2}", f"v_lshlrev_b32 v{T+3}, 16, v{T+2}", f"v_and_b32 v{T+2}, 0xffff0000, v{T+2}",
                f"v_add_f32 v{RES+4*q+2*d2}, v{T+3}, v{T}", f"v_add_f32 v{RES+4*q+2*d2+1}, v{T+2}, v{T+1}"]
    for ks in range(KSW):
        em.wait_vm(max(wseq[ks], aseq[ks]))
        w = WP + (ks % NP)*8; a_ = AR + (ks % DA)*8
        for a in range(2):
            for b in range(2):
                c = "0" if ks == 0 else rng(acc(a,b),16)
                e(f"v_mfma_f32_32x32x16_bf16 {rng(acc(a,b),16)}, {rng(w+4*a,4)}, {rng(a_+4*b,4)}, {c}")
                if ks >= 3:
                    for _ in range(4):
                        if rq:
                            x = rq.pop(0); x() if callable(x) else e(x)
        if ks + NP < KSW: issue_w(ks + NP)
        if ks + DA < KSW: issue_a(ks + DA)
    while rq:
        x = rq.pop(0); x() if callable(x) else e(x)
    dstamp(72)
    e("s_nop 15")
    e(f"s_mul_i32 s50, s3, {NQ4*1024}"); e("v_add_u32 v11, s50, v2"); e("v_add_u32 v14, 65536, v11")
    for o in range(NW):
        base = ACC + o*NREG
        for r4 in range(NQ4):
            off = o*NW*NQ4*1024 + r4*1024
            em.lds(f"ds_write_b128 v{11 if off < 65536 else 14}, {rng(base+4*r4,4)} offset:{off % 65536}")
    e("s_waitcnt lgkmcnt(0)"); em.lg_done = em.lg
    e("s_barrier")
    e(f"s_mul_i32 s50, s3, {NW*NQ4*1024}"); e("v_add_u32 v11, s50, v2")
    RD = WP
    for w in range(NW):
        for r4 in range(NQ4): em.lds(f"ds_read_b128 {rng(RD+w*NREG+r4*4,4)}, v11 offset:{w*NQ4*1024 + r4*1024}")
    e("s_waitcnt lgkmcnt(0)"); em.lg_done = em.lg
    n = NW
    while n > 1:
        for w in range(n//2):
            for i in range(NREG): e(f"v_add_f32 v{RD+w*NREG+i}, v{RD+w*NREG+i}, v{RD+(w+n//2)*NREG+i}")
        n //= 2
    for i in range(NREG): e(f"v_add_f32 v{RD+i}, v{RD+i}, v{RES+i}")
    dstamp(73)
    for q in range(NQ4): em.vmem(f"buffer_store_dwordx4 {rng(RD+4*q,4)}, v10, s[16:19], 0 offen offset:{32*q}")
```

```python
import sys
from common import *
from k2 import gen_k2
HEADER = open("parallel_sum__ssm_conv_s5__glu_gated_swiglu__prompt.s.ref").read().split("; Override launch geometry")[0]
def build(kernels, path):
    s = HEADER
    for (name, text, kdt, lds, grid, block) in kernels:
        s += f"; @launch kernel={name} grid=({grid},1,1) block=({block},1,1) lds={lds}\n"
    s += '.amdgcn_target "amdgcn-amd-amdhsa--gfx950"\n.text\n'
    for k in kernels: s += k[1]
    s += '.section .rodata,"a"\n'
    for k in kernels: s += k[2]
    open(path, "w").write(s)
if __name__ == "__main__":
    which = sys.argv[1]; path = sys.argv[2]
    ks = []
    if which == "G":
        from k1c import gen_k1
        t, k, lds = gen_k1(); ks.append(("k1_kernel", t, k, lds, 256, 512))
    if which == "F":
        from k1b import gen_k1
        t, k, lds = gen_k1(); ks.append(("k1_kernel", t, k, lds, 256, 512))
    if "1" in which:
        from k1b import gen_k1
        t, k, lds = gen_k1(); ks.append(("k1_kernel", t, k, lds, 256, 512))
    if "2" in which:
        t, k, lds = gen_k2(); ks.append(("k2_kernel", t, k, lds, 256, 256))
    build(ks, path)
```

```python
from common import *
import os
U = 4096
SLAB = [0, 8*U, 16*U, 24*U]
MREG = 32*U
MISC = 38*U
L_NONCE = MISC
L_SEG = MISC + 64
L_RS = MISC + 64 + 2048
L_CSF = MISC + 64 + 2048 + 512
LDS_TOTAL = 40*U
MINI = MREG
def X_base(kb): return SLAB[kb % 4]
def S0_base(kb): return SLAB[kb % 4] + 4*U
def A0_base(kb): return SLAB[kb % 4] + 6*U
T1_base = [MREG, MREG+2*U, MREG+4*U, SLAB[0], SLAB[0]+2*U, SLAB[0]+4*U, SLAB[0]+6*U, SLAB[1]+4*U]
T4_base = [SLAB[1], SLAB[2], SLAB[2]+4*U, SLAB[3], SLAB[3]+4*U, MREG, SLAB[0], SLAB[0]+4*U]
HT_A = SLAB[1] + 4*U
HT_B = MREG + 4*U
O_ST, O_CS, O_E = 0, SZ_ST, SZ_ST + SZ_CS
O_DN = SZ_ST + SZ_CS + SZ_E
FUSED = int(os.environ.get('FUSED', '0'))
SC = ' sc0 sc1' if FUSED else ''
SPIN_MAX = 20000
env = lambda k, d: int(os.environ.get(k, str(d)))
PREF = env("PREF", 0); ROT = env("ROT", 0); VP2 = 26
HDBG = env("HDBG", 0)
CPF = env("CPF", 0)
NOTAG = env("NOTAG", 0)
ONLYST = env("ONLYST", 0)
FINE = env("FINE", 0)
NOBAR = env("NOBAR", 0)
NOCOMP = env("NOCOMP", 0); DQ_RATE = env("DQ_RATE", 1)
NF = {0: env("NF0", 8), 1: env("NF1", 5)}
MINI_AT = "B2"
SEG_BAR = "B8a"
GATHER_AT = "B5"
NFI = env("NFI", 8)
DMA_SCHED = {"B0": [("stage", 2), ("stage", 3), ("mini", 0)], "B1": [("stage", 4)], "B2": [("stage", 5)],
             "B3": [("stage", 6), ("t1", 0), ("t1", 1), ("t1", 2)],
             "B4": [("stage", 7)], "B5": [("t1", 3), ("t1", 4), ("t1", 5), ("t1", 6)], "B6": [("t1", 7), ("t4", 0)], "B7": [("t4", 1), ("t4", 2)],
             "B8": [("t4", 3), ("t4", 4)], "B8a": [("t4", 5)], "B9": [("t4", 6), ("t4", 7)]}
LOG2E = "0x3fb8aa3b"; NLOG2E = "0xbfb8aa3b"; INV2PI = "0x3e22f983"

def rng(r, n): return f"v[{r}:{r+n-1}]"

class Stream:
    def __init__(self, em):
        self.em = em; self.q = []; self.events = set()
    def add(self, items): self.q.extend(items)
    def signal(self, ev): self.events.add(ev)
    def _one(self):
        while self.q:
            it = self.q[0]
            if isinstance(it, tuple) and it[0] == "after":
                if it[1] in self.events: self.q.pop(0); continue
                return False
            if isinstance(it, tuple) and it[0] == "mark":
                self.q.pop(0); self.events.add("done:" + it[1]); continue
            self.q.pop(0)
            for x in (it if isinstance(it, list) else [it]):
                if callable(x): x(self.em)
                else: self.em.e(x)
            return True
        return False
    def fill(self, n):
        for _ in range(n):
            if not self._one(): break
    def flush_until(self, mark):
        while ("done:" + mark) not in self.events:
            if not self._one():
                if ("done:" + mark) in self.events: break
                raise RuntimeError(f"blocked flushing until {mark}: head {self.q[0] if self.q else None}")
    def flush(self):
        while self.q:
            if not self._one():
                if self.q: raise RuntimeError(f"blocked: {self.q[0]}")

VPI, VRS, VLANE16 = 16, 17, 27
VLRE, VLIM, VLDT = 1, 18, 19
VX0, VX1, VSB, VT2, VT4 = 20, 21, 22, 23, 24
VC1, VI2, VI2T = 20, 21, 22
VT1R = 25
VXR = 28; VXM = 28
VBR = 32
VT2A, VT2B, VT4A, VT4B = 36, 37, 38, 39
WR = 40
XF = 128
def xf(ks): return XF + 4*ks
STAG = 70
SKIP = [int(x) for x in os.environ.get("SKIP", "").split(",") if x]

def dma(em, srdreg, voff, soff_base, soff_add, m0_sreg, m0_add):
    if srdreg in SKIP: return max(em.vm - 1, 0)
    em.e(f"s_add_u32 m0, s{m0_sreg}, {m0_add}")
    if soff_base is None: em.e(f"s_mov_b32 s84, {soff_add}")
    else: em.e(f"s_add_u32 s84, s{soff_base}, {soff_add}")
    return em.vmem(f"buffer_load_dwordx4 v{voff}, s[{srdreg}:{srdreg+3}], s84 offen lds")
TA, TB = 36, 50
def ta(kb): return f"s{TA+kb}"
def tb(kb): return f"s{TB+kb}"
def dma_S0(em, kb, base=None): return dma(em, 12, VSB, None, ta(kb), 75, S0_base(kb) if base is None else base)
def dma_T2(em, kb, base, sreg): return dma(em, 16, VT2, sreg, tb(kb), 75, base)

slow_paths = []
def tagged_load(em, pre, insts, tagregs, label, maskpre=None):
    for p in pre: em.e(p)
    seqs = [em.vmem(i) for i in insts]
    def cmp_code():
        out = []
        for n, t in enumerate(tagregs):
            dst = "vcc" if n == 0 else "s[90:91]"
            out.append(f"v_cmp_ne_u32 {dst}, s{STAG}, v{t}")
            if maskpre is not None:
                out += maskpre(n)
                out.append(f"s_and_b64 {dst}, {dst}, s[92:93]")
            if n: out.append("s_or_b64 vcc, vcc, s[90:91]")
        return out
    def check(em2):
        em2.wait_vm(seqs[-1])
        if NOTAG: return
        for i in cmp_code(): em2.e(i)
        em2.e(f"s_cbranch_vccnz {label}_SLOW")
        em2.lab(f"{label}_OK")
        sp = [f"{label}_SLOW:", "    s_sleep 1"]
        sp += ["    " + i for i in pre] + ["    " + i for i in insts]
        sp.append("    s_waitcnt vmcnt(0)")
        sp += ["    " + i for i in cmp_code()]
        sp.append(f"    s_cbranch_vccz {label}_OK")
        sp.append("    s_add_u32 s32, s32, 1")
        sp.append(f"    s_cmp_lt_u32 s32, {SPIN_MAX}")
        sp.append(f"    s_cbranch_scc1 {label}_SLOW")
        sp.append(f"    s_branch {label}_OK")
        slow_paths.append("\n".join(sp))
    return check

def mini_dma_lines(C):
    L = []
    def e(x): L.append("    " + x)
    def d(*a):
        t = Em(); dma(t, *a); L.extend(t.L)
    e("s_cmp_eq_u32 s88, 0"); e(f"s_cbranch_scc1 K1_MINI0_{C}")
    e(f"s_mul_i32 s91, s89, {128*3584}")
    e("s_cmp_eq_u32 s88, 1"); e(f"s_cbranch_scc1 K1_MINI1_{C}")
    e("s_sub_u32 s90, s88, 2"); e("s_lshl_b32 s90, s90, 6"); e("s_add_u32 s90, s90, s81"); e("s_add_u32 s90, s90, s91")
    d(16, VT2, 90, 0, 75, MINI); d(16, VT2, 90, 64*3584, 75, MINI + 2*U)
    e(f"s_branch K1_MINIDONE_{C}")
    L.append(f"K1_MINI1_{C}:")
    e("s_add_u32 s90, s80, s91")
    d(16, VT2, 90, 0, 75, MINI); d(16, VT2, 90, 64*3584, 75, MINI + 2*U)
    e("s_add_u32 s90, s79, s91")
    e("v_lshrrev_b32 v2, 1, v0"); e("s_lshl_b32 s91, s4, 5"); e("v_add_u32 v2, s91, v2"); e("s_movk_i32 s91, 3584"); e("v_mul_lo_u32 v2, v2, s91")
    e("v_and_b32 v3, 1, v0"); e("v_lshl_add_u32 v2, v3, 4, v2")
    d(16, 2, 90, 0, 75, MINI + 4*U)
    e(f"s_branch K1_MINIDONE_{C}")
    L.append(f"K1_MINI0_{C}:")
    e("s_lshl_b32 s90, s89, 8")
    d(12, VSB, 90, 0, 75, MINI); d(12, VSB, 90, 128, 75, MINI + 2*U)
    L.append(f"K1_MINIDONE_{C}:")
    return L

def mini_compute(t2hi, bhi):
    L = []; a = L.append
    a("s_cmp_eq_u32 s88, 1"); a("s_cselect_b32 s90, 3, 2")
    a("s_cmp_ge_u32 s3, s90"); a("s_cbranch_scc1 K1_MCDONE")
    for i in range(4): a(f"v_mov_b32 v{2+i}, 0x3f803f80")
    a("s_cmp_eq_u32 s88, 0"); a("s_cbranch_scc1 K1_MC0")
    def mf(h):
        a("s_waitcnt lgkmcnt(0)")
        for k4 in range(4):
            c = "0" if (h == 0 and k4 == 0) else "v[112:127]"
            a(f"v_mfma_f32_32x32x16_bf16 v[112:127], v[2:5], v[{96+4*k4}:{99+4*k4}], {c}")
    a("s_cmp_eq_u32 s3, 2"); a("s_cbranch_scc1 K1_MC1N")
    a("s_lshl_b32 s90, s3, 5"); a(f"v_xor_b32 v6, s90, v{VT2A}"); a(f"v_add_u32 v6, {MINI - t2hi}, v6")
    for h in range(2):
        for k4 in range(4):
            o = h*2*U + k4*1024
            a(f"ds_read_b64_tr_b16 v[{96+4*k4}:{97+4*k4}], v6 offset:{o}")
            a(f"ds_read_b64_tr_b16 v[{98+4*k4}:{99+4*k4}], v6 offset:{o+256}")
        mf(h)
    a("s_branch K1_MCM")
    a("K1_MC1N:")
    a("v_bfe_u32 v6, v0, 4, 1"); a("v_lshlrev_b32 v6, 12, v6"); a("v_lshrrev_b32 v7, 5, v0"); a("v_bfe_u32 v8, v0, 2, 2"); a("v_lshl_add_u32 v7, v7, 3, v8")
    a("v_lshl_add_u32 v6, v7, 5, v6"); a("v_and_b32 v7, 3, v0"); a("v_lshl_add_u32 v6, v7, 3, v6"); a(f"v_add_u32 v6, {MINI + 4*U}, v6")
    for h in range(2):
        for k4 in range(4):
            o = (4*h + k4)*512
            a(f"ds_read_b64_tr_b16 v[{96+4*k4}:{97+4*k4}], v6 offset:{o}")
            a(f"ds_read_b64_tr_b16 v[{98+4*k4}:{99+4*k4}], v6 offset:{o+128}")
        mf(h)
    a("s_branch K1_MCM")
    a("K1_MC0:")
    a("s_lshl_b32 s90, s3, 12"); a(f"s_add_u32 s90, s90, {MINI - bhi}")
    for h in range(2):
        for k4 in range(4):
            a(f"v_add_u32 v6, s90, v{VBR + k4}")
            a(f"ds_read_b128 v[{96+4*k4}:{99+4*k4}], v6 offset:{h*2*U}")
        mf(h)
    a("K1_MCM:")
    a("s_nop 15"); a("s_nop 3")
    a("s_lshl_b32 s90, s88, 1"); a("s_add_u32 s90, s90, s3")
    a("s_cmp_eq_u32 s3, 2"); a("s_cselect_b32 s90, 8, s90")
    a("s_mul_i32 s91, s7, 9"); a("s_add_u32 s90, s90, s91"); a("s_lshl_b32 s90, s90, 10")
    a("s_lshr_b32 s91, s89, 1"); a("s_lshl_b32 s91, s91, 9"); a("s_add_u32 s90, s90, s91")
    a("s_and_b32 s91, s89, 1"); a("s_lshl_b32 s91, s91, 3"); a("s_add_u32 s90, s90, s91")
    a("v_mov_b32 v4, v112"); a(f"v_mov_b32 v5, s{STAG}")
    a(f"s_add_u32 s90, s90, {O_CS}")
    a("s_mov_b32 exec_hi, 0")
    a(f"buffer_store_dwordx2 v[4:5], v{VLANE16}, s[24:27], s90 offen sc0 sc1")
    a("s_mov_b64 exec, -1")
    a("K1_MCDONE:")
    return L

def side_job(R):
    ld = []; stl = []; a = ld.append
    hold = {}
    a("s_lshl_b32 s90, s6, 4"); a("s_add_u32 s90, s90, s7")
    a("s_mov_b32 s28, s60"); a("s_mov_b32 s29, s61"); a(f"s_mov_b32 s30, {F*D*2}"); a("s_mov_b32 s31, 0x00020000")
    a("v_and_b32 v2, 31, v0"); a("v_lshrrev_b32 v3, 5, v0"); a("v_lshlrev_b32 v4, 12, v3"); a("v_lshl_add_u32 v4, v2, 1, v4")
    for n, sdst in ((0, 33), (1, 87)):
        a("s_lshl_b32 s91, s4, 1"); a(f"s_add_u32 s91, s91, {n}"); a("s_min_u32 s91, s91, 6")
        a("s_mul_i32 s92, s90, 7"); a("s_add_u32 s92, s92, s91")
        a("s_mov_b32 s93, 38347923"); a("s_mul_hi_u32 s93, s92, s93")
        a("s_mul_i32 s94, s93, 112"); a("s_sub_u32 s94, s92, s94")
        a("s_lshl_b32 s95, s94, 14"); a("s_lshl_b32 s91, s93, 6"); a("s_add_u32 s95, s95, s91")
        for j in range(8):
            ro = (8*(j>>2) + (j&3))*1024
            if ro > 4095:
                a(f"s_add_u32 s91, s95, {ro & ~4095}")
                a(lambda em_, j=j, ro=ro, n=n: em_.vmem(f"buffer_load_ushort v{R+8*n+j}, v4, s[28:31], s91 offen offset:{ro & 4095}"))
            else:
                a(lambda em_, j=j, ro=ro, n=n: em_.vmem(f"buffer_load_ushort v{R+8*n+j}, v4, s[28:31], s95 offen offset:{ro}"))
        a(f"s_mul_i32 s{sdst}, s93, {NKS}"); a(f"s_add_u32 s{sdst}, s{sdst}, s94"); a(f"s_add_u32 s{sdst}, s{sdst}, 64"); a(f"s_lshl_b32 s{sdst}, s{sdst}, 10")
    a("s_lshl_b32 s93, s90, 2"); a("s_add_u32 s93, s93, s4"); a("s_lshr_b32 s94, s93, 6"); a("s_and_b32 s95, s93, 63")
    a("v_lshlrev_b32 v4, 10, v2"); a("v_lshl_add_u32 v4, v3, 3, v4")
    a("s_lshl_b32 s91, s94, 15"); a("s_lshl_b32 s90, s95, 4"); a("s_add_u32 s91, s91, s90")
    a("s_mov_b32 s28, s46"); a("s_mov_b32 s29, s47"); a(f"s_mov_b32 s30, {D*P*2}")
    a(lambda em_: em_.vmem(f"buffer_load_dwordx2 {rng(R+16,2)}, v4, s[28:31], s91 offen"))
    a("s_mov_b32 s28, s48"); a("s_mov_b32 s29, s49")
    a(lambda em_: hold.__setitem__("sq", em_.vmem(f"buffer_load_dwordx2 {rng(R+18,2)}, v4, s[28:31], s91 offen")))
    a(f"s_mul_i32 s85, s94, {NKS}"); a("s_add_u32 s85, s85, s95"); a("s_lshl_b32 s85, s85, 10")
    b = stl.append
    b(lambda em_: em_.wait_vm(hold["sq"]))
    b([f"s_add_u32 s28, s66, {OFF_WT}", "s_addc_u32 s29, s67, 0"])
    b(f"s_mov_b32 s30, {SZ_WT}")
    for n, sdst in ((0, 33), (1, 87)):
        for j in range(4): b(f"v_lshl_or_b32 v{R+8*n+j}, v{R+8*n+1+2*j}, 16, v{R+8*n+2*j}")
        b(lambda em_, n=n, sdst=sdst: em_.vmem(f"buffer_store_dwordx4 {rng(R+8*n,4)}, v{VLANE16}, s[28:31], s{sdst} offen{SC}"))
    b("s_mov_b32 s90, 0x05040100"); b("s_mov_b32 s91, 0x07060302")
    b(f"v_perm_b32 v{R+4}, v{R+18}, v{R+16}, s90"); b(f"v_perm_b32 v{R+5}, v{R+18}, v{R+16}, s91")
    b(f"v_perm_b32 v{R+6}, v{R+19}, v{R+17}, s90"); b(f"v_perm_b32 v{R+7}, v{R+19}, v{R+17}, s91")
    b(lambda em_: em_.vmem(f"buffer_store_dwordx4 {rng(R+4,4)}, v{VLANE16}, s[28:31], s85 offen{SC}"))
    b("s_nop 1")
    return ld, stl


def hstamp(em, idx):
    if not HDBG: return
    L = f"HS{idx}_{id(em)%9973}"
    em.e("s_cmp_lg_u32 s2, 37"); em.e(f"s_cbranch_scc1 {L}")
    em.e("s_cmp_lg_u32 s3, 0"); em.e(f"s_cbranch_scc1 {L}")
    em.e("s_memrealtime s[34:35]"); em.e("s_waitcnt lgkmcnt(0)")
    em.e(f"s_mov_b32 s{HREG[idx]}, s34")
    em.lab(L)
HREG = {1: 96, 2: 97, 3: 98, 4: 99, 5: 100, 6: 101, 7: 33}

def gen_k1(name="k1_kernel"):
    slow_paths.clear()
    top = Em(); e = top.e
    top.L.append(f".globl {name}\n.p2align 8\n.type {name},@function\n{name}:")
    e("s_cmp_ge_u32 s2, 256"); e("s_cbranch_scc1 K1_END")
    if DIAG: e("s_memrealtime s[96:97]"); e("s_memtime s[98:99]")
    e("s_mov_b32 s32, 0")
    e("s_load_dwordx16 s[36:51], s[0:1], 0"); e("s_load_dwordx16 s[52:67], s[0:1], 64")
    if CPF:
        e("s_getpc_b64 s[90:91]")
        top.lab("K1_PC")
        e("v_lshrrev_b32 v2, 6, v0"); e("s_lshr_b32 s92, s2, 3"); e("s_lshl_b32 s92, s92, 3"); e("v_add_u32 v2, s92, v2")
        e("v_lshlrev_b32 v2, 8, v2"); e("v_and_b32 v3, 63, v0"); e("v_lshl_add_u32 v2, v3, 2, v2")
        e("s_mov_b32 s92, K1_CODE_END-K1_PC-4"); e("v_min_u32 v2, s92, v2")
        e("global_load_dword v126, v2, s[90:91]")
    e("v_lshrrev_b32 v1, 6, v0"); e("v_and_b32 v0, 63, v0"); e("s_nop 0"); e("v_readfirstlane_b32 s3, v1")
    e("s_and_b32 s72, s2, 7"); e("s_lshr_b32 s73, s2, 3")
    e("s_lshr_b32 s6, s72, 1"); e("s_lshl_b32 s6, s6, 2"); e("s_lshr_b32 s74, s73, 3"); e("s_add_u32 s6, s6, s74")
    e("s_and_b32 s7, s72, 1"); e("s_lshl_b32 s7, s7, 3"); e("s_and_b32 s74, s73, 7"); e("s_add_u32 s7, s7, s74")
    e("s_and_b32 s4, s3, 3"); e("s_lshr_b32 s5, s3, 2")
    e("s_lshl_b32 s75, s3, 10"); e("s_lshl_b32 s76, s3, 11")
    e("s_lshl_b32 s77, s5, 13"); e("s_lshl_b32 s74, s4, 11"); e("s_add_u32 s77, s77, s74")
    e("s_lshl_b32 s78, s6, 17")
    e("s_lshr_b32 s74, s7, 2"); e("s_mul_i32 s74, s74, 896"); e("s_and_b32 s83, s7, 3")
    def sel4(dst, vals):
        e(f"s_mov_b32 s{dst}, {vals[0]}")
        for q in (1, 2, 3):
            e(f"s_cmp_eq_u32 s83, {q}"); e(f"s_cselect_b32 s{dst}, {vals[q]}, s{dst}")
        e(f"s_add_u32 s{dst}, s{dst}, s74")
    sel4(80, (128, 384, 448, 704)); sel4(81, (0, 256, 512, 768)); sel4(82, (192, 192, 640, 640)); sel4(79, (192, 224, 640, 672))
    e("v_lshrrev_b32 v2, 3, v0"); e("v_and_b32 v3, 7, v0"); e("v_lshrrev_b32 v4, 1, v2"); e("v_xor_b32 v5, v3, v4")
    e("s_lshl_b32 s74, s3, 14")
    e("v_lshlrev_b32 v6, 10, v2"); e("v_lshl_add_u32 v6, v5, 4, v6"); e(f"v_add_u32 v{VX0}, s74, v6")
    e("v_xor_b32 v7, 4, v5"); e("v_lshlrev_b32 v8, 10, v2"); e("v_lshl_add_u32 v8, v7, 4, v8")
    e("s_add_u32 s83, s74, 8192"); e(f"v_add_u32 v{VX1}, s83, v8")
    e("s_and_b32 s74, s4, 1"); e("s_lshl_b32 s74, s74, 2"); e("v_xor_b32 v7, s74, v5")
    e("v_lshlrev_b32 v8, 10, v2"); e("v_lshl_add_u32 v8, v7, 4, v8")
    e("s_lshl_b32 s74, s7, 15"); e("s_lshl_b32 s83, s4, 13"); e("s_add_u32 s74, s74, s83"); e(f"v_add_u32 v{VSB}, s74, v8")
    e("v_lshrrev_b32 v6, 2, v0"); e("s_lshl_b32 s74, s4, 4"); e("v_add_u32 v6, s74, v6")
    e("s_movk_i32 s83, 3584"); e("v_mul_lo_u32 v6, v6, s83")
    e("v_and_b32 v7, 3, v0"); e("s_lshl_b32 s74, s5, 1"); e("v_xor_b32 v7, s74, v7"); e(f"v_lshl_add_u32 v{VT2}, v7, 4, v6")
    e("v_bfe_u32 v6, v2, 1, 1"); e("s_lshl_b32 s74, s5, 1"); e("v_or_b32 v6, s74, v6"); e("v_lshlrev_b32 v6, 1, v6"); e("v_xor_b32 v6, v3, v6")
    e("s_lshl_b32 s74, s4, 4"); e("v_add_u32 v7, s74, v2"); e("v_mul_lo_u32 v7, v7, s83"); e(f"v_lshl_add_u32 v{VT4}, v6, 4, v7")
    e(f"v_lshlrev_b32 v{VLANE16}, 4, v0")
    e("s_waitcnt lgkmcnt(0)")
    hstamp(top, 1)
    srd(top, 8, 36, 37, NROW*D*2)
    e("s_cmp_eq_u32 s5, 0")
    e("s_cselect_b32 s12, s42, s44"); e("s_cselect_b32 s13, s43, s45")
    e(f"s_mov_b32 s14, {P*D*2}"); e("s_mov_b32 s15, 0x00020000")
    e("s_cselect_b32 s16, s56, s58"); e("s_cselect_b32 s17, s57, s59")
    e(f"s_mov_b32 s18, {D*F*2}"); e("s_mov_b32 s19, 0x00020000")
    srd(top, 20, 66, 67, SZ_ACT, OFF_ACT)
    srd(top, 24, 66, 67, SZ_ST+SZ_CS+SZ_E+SZ_DN, OFF_ST)
    if DIAG: e("s_memtime s[34:35]"); e("s_waitcnt lgkmcnt(0)"); e("s_sub_u32 s95, s34, s98")
    e("s_cmp_lg_u32 s2, 0"); e("s_cbranch_scc1 K1_NONONCE")
    e("s_cmp_lg_u32 s3, 0"); e("s_cbranch_scc1 K1_NONONCE")
    e("s_memrealtime s[86:87]"); e("s_waitcnt lgkmcnt(0)"); e("s_or_b32 s86, s86, 1")
    e("v_mov_b32 v6, s86"); e("v_mov_b32 v7, 0"); e("s_mov_b64 exec, 1")
    e("global_store_dword v7, v6, s[64:65] sc0 sc1"); e("s_mov_b64 exec, -1")
    top.lab("K1_NONONCE")
    e("s_cmp_lg_u32 s3, 7"); e("s_cbranch_scc1 K1_NOPOLL")
    e("v_mov_b32 v7, 0"); e("global_load_dword v12, v7, s[64:65] sc1")
    top.lab("K1_NOPOLL")
    e("s_lshr_b32 s88, s6, 2"); e("s_and_b32 s89, s6, 3")
    e("s_lshl_b32 s90, s7, 3"); e("s_add_u32 s90, s90, s3"); e("s_lshl_b32 s90, s90, 10"); e("s_add_u32 s90, s90, s78")
    VST = 48; VNON = 12
    top.vmem(f"buffer_load_dwordx4 {rng(VST,4)}, v{VLANE16}, s[8:11], s90 offen")
    sq_stage = {}
    def stage_now(kb):
        dma(top, 8, VX0, 78, ta(kb), 76, X_base(kb)); dma(top, 8, VX1, 78, ta(kb), 76, X_base(kb) + 1024)
        dma_S0(top, kb); return dma_T2(top, kb, A0_base(kb), 80)
    e("s_mov_b32 s28, s38"); e("s_mov_b32 s29, s39"); e(f"s_mov_b32 s30, {P*2}"); e("s_mov_b32 s31, 0x00020000")
    e("v_and_b32 v6, 31, v0"); e("s_lshl_b32 s90, s7, 6"); e("v_lshl_add_u32 v6, v6, 1, s90")
    top.vmem(f"buffer_load_ushort v{VLRE}, v6, s[28:31], 0 offen")
    e("s_mov_b32 s28, s40"); e("s_mov_b32 s29, s41")
    top.vmem(f"buffer_load_ushort v{VLIM}, v6, s[28:31], 0 offen")
    e("s_mov_b32 s28, s50"); e("s_mov_b32 s29, s51")
    sq_lam = top.vmem(f"buffer_load_ushort v{VLDT}, v6, s[28:31], 0 offen")
    if ROT:
        e("s_lshr_b32 s90, s73, 3"); e("s_lshl_b32 s90, s90, 1"); e("s_add_u32 s90, s90, s73")
    else:
        e("s_mov_b32 s90, 0")
    for kb in range(8):
        e(f"s_add_u32 s91, s90, {kb}"); e("s_and_b32 s91, s91, 7"); e(f"s_lshl_b32 s{TA+kb}, s91, 7"); e(f"s_mul_i32 s{TB+kb}, s91, {64*3584}")
    sq_stage[0] = stage_now(0); sq_stage[1] = stage_now(1)
    if PREF:
        e("s_cmp_lt_u32 s3, 2"); e("s_cselect_b32 s28, s36, s56"); e("s_cselect_b32 s29, s37, s57"); e(f"s_mov_b32 s30, {D*F*2}"); e(f"s_cselect_b32 s30, {NROW*D*2}, s30")
        e("s_cmp_eq_u32 s3, 2"); e("s_cselect_b32 s28, s42, s28"); e("s_cselect_b32 s29, s43, s29"); e(f"s_cselect_b32 s30, {P*D*2}, s30")
        e("s_cmp_eq_u32 s3, 3"); e("s_cselect_b32 s28, s44, s28"); e("s_cselect_b32 s29, s45, s29"); e(f"s_cselect_b32 s30, {P*D*2}, s30")
        e("s_cmp_ge_u32 s3, 6"); e("s_cselect_b32 s28, s58, s28"); e("s_cselect_b32 s29, s59, s29")
        e("s_mov_b32 s31, 0x00020000")
        e("v_lshrrev_b32 v2, 2, v0"); e("v_and_b32 v3, 3, v0")
        e("s_cmp_ge_u32 s3, 4"); e("s_cbranch_scc1 K1_PFW")
        e("v_min_u32 v2, 7, v2")
        e("s_lshr_b32 s90, s72, 1"); e("s_lshl_b32 s90, s90, 9"); e("s_lshl_b32 s91, s73, 4"); e("s_add_u32 s90, s90, s91")
        e("s_and_b32 s91, s3, 1"); e("s_lshl_b32 s91, s91, 3"); e("s_add_u32 s90, s90, s91")
        e("s_and_b32 s91, s72, 1"); e("s_lshl_b32 s91, s91, 8"); e("s_lshl_b32 s92, s73, 3"); e("s_add_u32 s91, s91, s92")
        e("s_cmp_lt_u32 s3, 2"); e("s_cselect_b32 s90, s90, s91")
        e("v_add_u32 v2, s90, v2"); e("v_lshlrev_b32 v2, 10, v2"); e("v_lshl_add_u32 v2, v3, 5, v2")
        e("s_movk_i32 s33, 128")
        e("s_branch K1_PFGO")
        top.lab("K1_PFW")
        e("v_min_u32 v2, 5, v2")
        e("v_cmp_lt_u32 vcc, 2, v2"); e("v_lshlrev_b32 v2, 1, v2"); e("v_addc_co_u32 v2, vcc, 1, v2, vcc")
        e("s_and_b32 s91, s72, 1"); e("s_mul_i32 s91, s91, 14"); e("v_add_u32 v2, s91, v2"); e("v_lshlrev_b32 v2, 7, v2"); e("v_lshl_add_u32 v2, v3, 5, v2")
        e("s_lshl_b32 s90, s73, 1"); e("s_and_b32 s91, s3, 1"); e("s_add_u32 s90, s90, s91"); e("s_mul_i32 s90, s90, 3584"); e("v_add_u32 v2, s90, v2")
        e(f"s_mov_b32 s33, {64*3584}")
        top.lab("K1_PFGO")
        for kb in range(2, 8):
            e(f"s_mul_i32 s90, s33, {kb}")
            top.vmem("buffer_load_dword v127, v2, s[28:31], s90 offen")
        e("v_bfe_u32 v2, v0, 2, 2"); e("s_lshr_b32 s90, s4, 1"); e("s_lshl_b32 s91, s90, 2"); e("v_add_u32 v2, s91, v2"); e("v_lshlrev_b32 v2, 1, v2")
        e("v_subrev_u32 v2, s90, v2")
        e("s_and_b32 s91, s72, 1"); e("s_mul_i32 s91, s91, 14"); e("v_add_u32 v2, s91, v2"); e("v_lshlrev_b32 v2, 7, v2"); e("v_lshl_add_u32 v2, v3, 5, v2")
        e("v_lshrrev_b32 v3, 4, v0"); e(f"s_mov_b32 s90, {64*3584}"); e("v_mul_lo_u32 v3, v3, s90"); e("v_add_u32 v2, v2, v3")
        e("s_lshl_b32 s90, s73, 1"); e("s_and_b32 s91, s4, 1"); e("s_add_u32 s90, s90, s91"); e("s_mul_i32 s90, s90, 3584"); e(f"v_add_u32 v{VP2}, s90, v2")
        if PREF == 2:
            top.vmem(f"buffer_load_dword v127, v{VP2}, s[16:19], 0 offen")
            e(f"s_mov_b32 s90, {256*3584}")
            top.vmem(f"buffer_load_dword v127, v{VP2}, s[16:19], s90 offen")
    e("v_and_b32 v2, 31, v0"); e("v_lshrrev_b32 v3, 5, v0")
    e("v_bfe_u32 v4, v2, 2, 1"); e("v_lshlrev_b32 v4, 4, v4")
    e("v_lshrrev_b32 v5, 3, v2"); e("v_lshl_add_u32 v4, v5, 2, v4")
    e("v_and_b32 v5, 3, v2"); e(f"v_add_u32 v{VPI}, v4, v5")
    e(f"v_bfe_u32 v5, v{VPI}, 1, 3"); e("v_xor_b32 v5, v3, v5")
    e(f"v_lshlrev_b32 v6, 7, v{VPI}"); e("v_lshl_add_u32 v6, v5, 4, v6")
    e("s_lshl_b32 s90, s4, 12"); e("v_add_u32 v6, s90, v6")
    for s4 in range(4): e(f"v_xor_b32 v{VXR+s4}, {32*s4}, v6")
    e("v_bfe_u32 v2, v0, 4, 1"); e("v_lshrrev_b32 v3, 5, v0"); e("v_bfe_u32 v4, v0, 2, 2"); e("v_and_b32 v5, 3, v0")
    e("v_lshl_add_u32 v6, v3, 3, v4")
    e("v_lshlrev_b32 v7, 6, v6"); e("v_lshl_add_u32 v7, v5, 3, v7"); e("v_lshl_add_u32 v7, v2, 12, v7")
    e(f"v_lshl_add_u32 v{VT2A}, v2, 5, v7"); e(f"v_xor_b32 v{VT2B}, 32, v{VT2A}")
    e("s_and_b32 s90, s7, 1"); e("s_lshl_b32 s90, s90, 5"); e(f"v_xor_b32 v{VT1R}, s90, v{VT2A}")
    e("v_lshlrev_b32 v7, 7, v6"); e("v_lshl_add_u32 v7, v5, 3, v7"); e("v_lshl_add_u32 v7, v2, 13, v7")
    e("v_bfe_u32 v8, v4, 1, 1"); e("v_lshl_or_b32 v8, v2, 1, v8"); e("v_lshl_add_u32 v7, v8, 5, v7")
    e("s_lshl_b32 s90, s5, 6"); e(f"v_xor_b32 v{VT4A}, s90, v7"); e(f"v_xor_b32 v{VT4B}, 32, v{VT4A}")
    e("v_and_b32 v2, 31, v0"); e("v_lshrrev_b32 v3, 5, v0")
    e("v_bfe_u32 v5, v2, 1, 3"); e("v_xor_b32 v5, v3, v5")
    e("v_lshlrev_b32 v6, 7, v2"); e("v_lshl_add_u32 v6, v5, 4, v6")
    for s4 in range(4): e(f"v_xor_b32 v{VBR+s4}, {32*s4}, v6")
    top.wait_vm(0)
    if DIAG: e("s_memtime s[34:35]"); e("s_waitcnt lgkmcnt(0)"); e("s_sub_u32 s94, s34, s98")
    e("s_mov_b32 s90, 0x3f803f80"); e("v_mov_b32 v2, 0"); e("v_mov_b32 v3, 0")
    for i in range(4):
        e(f"v_dot2_f32_bf16 v2, v{VST+i}, s90, v2"); e(f"v_dot2_f32_bf16 v3, v{VST+i}, v{VST+i}, v3")
    e("s_nop 2")
    for dpp in ("row_shr:1", "row_shr:2", "row_shr:4", "row_shr:8", "row_bcast:15 row_mask:0xa", "row_bcast:31 row_mask:0xc"):
        rm = "" if "row_mask" in dpp else " row_mask:0xf"
        e(f"v_add_f32_dpp v2, v2, v2 {dpp}{rm} bank_mask:0xf"); e(f"v_add_f32_dpp v3, v3, v3 {dpp}{rm} bank_mask:0xf"); e("s_nop 1")
    e("v_mul_f32 v2, 0x3b000000, v2"); e("v_mul_f32 v3, 0x3b000000, v3"); e("v_fma_f32 v3, -v2, v2, v3"); e("v_max_f32 v3, 0, v3")
    e("v_cvt_pk_bf16_f32 v4, v2, v3"); e("v_and_b32 v5, 0xffff0000, v4"); e("v_add_f32 v5, 0x3727c5ac, v5")
    e("v_cvt_pk_bf16_f32 v5, v5, v5"); e("v_lshlrev_b32 v5, 16, v5"); e("v_sqrt_f32 v5, v5"); e("s_nop 0")
    e("v_cvt_pk_bf16_f32 v8, v2, v5")
    e("s_cmp_lg_u32 s3, 7"); e("s_cbranch_scc1 K1_NN2")
    top.lab("K1_NLOOP")
    e(f"v_readfirstlane_b32 s{STAG}, v{VNON}"); e(f"s_cmp_lg_u32 s{STAG}, 0"); e("s_cbranch_scc1 K1_NGOT")
    e("v_mov_b32 v7, 0"); e(f"global_load_dword v{VNON}, v7, s[64:65] sc1"); e("s_waitcnt vmcnt(0)")
    e("s_add_u32 s32, s32, 1"); e(f"s_cmp_lt_u32 s32, {SPIN_MAX}"); e("s_cbranch_scc1 K1_NLOOP")
    top.lab("K1_NGOT")
    e(f"v_mov_b32 v7, {L_NONCE}"); e(f"ds_write_b32 v7, v{VNON}"); e("s_waitcnt lgkmcnt(0)")
    top.lab("K1_NN2")
    top.wait_vm(sq_stage[0])
    e("s_barrier")
    hstamp(top, 2)
    if DIAG: e("s_memtime s[34:35]"); e("s_waitcnt lgkmcnt(0)"); e("s_sub_u32 s100, s34, s98"); e("s_mov_b32 s101, 0")
    e(f"v_mov_b32 v7, {L_NONCE}"); e("ds_read_b32 v6, v7"); e("s_waitcnt lgkmcnt(0)"); e(f"v_readfirstlane_b32 s{STAG}, v6")
    e("s_lshl_b32 s90, s6, 7"); e("s_lshl_b32 s91, s7, 3"); e("s_add_u32 s90, s90, s91"); e("s_add_u32 s90, s90, s3"); e("s_lshl_b32 s90, s90, 3")
    e(f"v_mov_b32 v9, s{STAG}"); e("v_mov_b32 v7, 0")
    e("s_mov_b32 exec_lo, 0"); e("s_brev_b32 exec_hi, 1")
    top.vmem(f"buffer_store_dwordx2 v[8:9], v7, s[24:27], s90 offen offset:{O_ST} sc0 sc1")
    e("s_mov_b64 exec, -1")
    e("s_cmp_lg_u32 s5, 0"); e("s_cbranch_scc1 K1_CH1")
    texts = [top.text()]
    for ch in range(2): texts.append(gen_ch(ch, top, sq_stage, sq_lam))
    tail = Em(); tail.lab("K1_FIN")
    if FUSED:
        from k2f import gen_part2
        gen_part2(tail)
    if DIAG:
        e = tail.e
        e("s_waitcnt vmcnt(0)")
        e("s_memrealtime s[86:87]"); e("s_memtime s[88:89]"); e("s_waitcnt lgkmcnt(0)")
        e("s_cmp_lg_u32 s3, 0"); e("s_cbranch_scc1 K1_END")
        e("v_mov_b32 v20, s96"); e("v_mov_b32 v21, s86"); e("s_sub_u32 s88, s88, s98"); e("v_mov_b32 v22, s88"); e("v_mov_b32 v23, 0")
        if FUSED:
            e("v_mov_b32 v28, s70"); e("v_mov_b32 v29, s71"); e("v_mov_b32 v30, s72"); e("v_mov_b32 v31, s73")
        e("s_lshl_b32 s50, s2, 5"); e(f"s_add_u32 s50, s50, {OFF_TS}"); e("v_mov_b32 v24, s50")
        e("s_mov_b64 exec, 1"); e("global_store_dwordx4 v24, v[20:23], s[66:67]")
        if FUSED: e("global_store_dwordx4 v24, v[28:31], s[66:67] offset:16")
    if HDBG:
        e = tail.e
        e("s_waitcnt vmcnt(0)")
        hstamp(tail, 7)
        e("s_cmp_lg_u32 s2, 37"); e("s_cbranch_scc1 K1_END"); e("s_cmp_lg_u32 s3, 0"); e("s_cbranch_scc1 K1_END")
        for i in range(2, 8):
            e(f"s_sub_u32 s34, s{HREG[i]}, s96"); e(f"v_mov_b32 v{20+i}, s34")
        e("v_mov_b32 v20, 0"); e("s_mov_b64 exec, 1")
        e("global_store_dwordx4 v20, v[22:25], s[64:65] offset:16"); e("global_store_dwordx2 v20, v[26:27], s[64:65] offset:32")
    tail.lab("K1_END"); tail.e("s_endpgm")
    return "".join(texts) + tail.text() + "\n".join(slow_paths) + "\nK1_CODE_END:\n    s_endpgm\n", kd(name, 256), LDS_TOTAL

from k1b_ch import gen_ch
```

```python
from common import *
import os
import k1b
from k1b import hstamp, STAG, O_ST, O_DN, SPIN_MAX, slow_paths
O_DW = O_DN + 4
def gen_part2(em, NW=8):
    NP = int(os.environ.get("K2NP", "14")); DA = int(os.environ.get("K2DA", "5"))
    e = em.e
    KSW = NKS // NW
    def rng(r,n): return f"v[{r}:{r+n-1}]"
    def dstamp(n):
        if DIAG: e("s_memtime s[34:35]"); e("s_waitcnt lgkmcnt(0)"); e(f"s_sub_u32 s{n}, s34, s98")
    em.vm = 0; em.vm_done = 0; em.lg = 0; em.lg_done = 0
    e("s_load_dwordx2 s[36:37], s[0:1], %d" % KA['dsk'])
    e(f"s_mov_b32 s74, s{STAG}")
    e("s_and_b32 s4, s2, 7"); e("s_lshr_b32 s5, s2, 3"); e("s_lshr_b32 s38, s4, 1"); e("s_and_b32 s39, s4, 1")
    e("s_lshl_b32 s38, s38, 3"); e("s_lshr_b32 s40, s5, 2"); e("s_add_u32 s38, s38, s40")
    e("s_lshl_b32 s39, s39, 2"); e("s_and_b32 s40, s5, 3"); e("s_add_u32 s39, s39, s40")
    e("v_and_b32 v2, 31, v0"); e("s_lshl_b32 s41, s39, 5"); e("v_add_u32 v2, s41, v2"); e("v_lshlrev_b32 v2, 4, v2")
    e(f"s_mov_b32 s45, {O_DN + 8}")
    em.lab("P2_WPOLL")
    e("buffer_load_dword v3, v2, s[24:27], s45 offen sc1")
    e("s_waitcnt vmcnt(0)")
    e("v_cmp_ne_u32 vcc, s74, v3")
    e("s_cbranch_vccz P2_WGO")
    e("s_add_u32 s32, s32, 1"); e(f"s_cmp_lt_u32 s32, {SPIN_MAX}"); e("s_cbranch_scc1 P2_WPOLL")
    em.lab("P2_WGO")
    e("s_waitcnt lgkmcnt(0)")
    srd(em, 12, 66, 67, SZ_WT, OFF_WT); srd(em, 28, 36, 37, D*2); srd(em, 16, 62, 63, NROW*D*4)
    e("v_lshlrev_b32 v2, 4, v0")
    e(f"s_mul_i32 s41, s3, {KSW*1024}"); e(f"s_mul_i32 s42, s38, {2*NKS*1024}"); e("s_add_u32 s42, s42, s41"); e(f"s_add_u32 s43, s42, {NKS*1024}")
    e(f"s_mul_i32 s44, s39, {2*NKS*1024}"); e("s_add_u32 s44, s44, s41"); e(f"s_add_u32 s45, s44, {NKS*1024}")
    ACC = 16; WP = 80; AR = WP + NP*8; EP = AR + DA*8
    def acc(a,b): return ACC + (2*a+b)*16
    wseq = {}; aseq = {}
    def soff(base, ks, tmp):
        hi = (ks // 4) * 4096
        if hi == 0: return base, (ks % 4)*1024
        e(f"s_add_u32 s{tmp}, s{base}, {hi}")
        return tmp, (ks % 4)*1024
    def issue_w(ks):
        r = WP + (ks % NP)*8
        s0, o = soff(44, ks, 46); em.vmem(f"buffer_load_dwordx4 {rng(r,4)}, v2, s[12:15], s{s0} offen offset:{o} sc1")
        s1, o = soff(45, ks, 47); wseq[ks] = em.vmem(f"buffer_load_dwordx4 {rng(r+4,4)}, v2, s[12:15], s{s1} offen offset:{o} sc1")
    def issue_a(ks):
        r = AR + (ks % DA)*8
        s0, o = soff(42, ks, 46); em.vmem(f"buffer_load_dwordx4 {rng(r,4)}, v2, s[20:23], s{s0} offen offset:{o} sc1")
        s1, o = soff(43, ks, 47); aseq[ks] = em.vmem(f"buffer_load_dwordx4 {rng(r+4,4)}, v2, s[20:23], s{s1} offen offset:{o} sc1")
    e("s_barrier")
    dstamp(70); hstamp(em, 4)
    e("s_cmp_lg_u32 s3, 0"); e("s_cbranch_scc1 P2_NOPOLL")
    e("s_lshl_b32 s40, s6, 4"); e("s_add_u32 s40, s40, s7"); e("s_lshl_b32 s40, s40, 4"); e(f"s_add_u32 s40, s40, {O_DN}")
    e("v_mov_b32 v12, s74"); e("v_mov_b32 v13, s74"); e("v_mov_b32 v14, 0")
    e("s_mov_b64 exec, 1")
    e("buffer_store_dwordx2 v[12:13], v14, s[24:27], s40 offen sc0 sc1")
    e("s_mov_b64 exec, -1")
    e("s_lshr_b32 s40, s38, 1"); e("s_lshl_b32 s40, s40, 4")
    e("v_and_b32 v12, 15, v0"); e("v_add_u32 v12, s40, v12"); e("v_lshlrev_b32 v12, 4, v12")
    e(f"s_mov_b32 s40, {O_DN}")
    em.lab("P2_POLL")
    e("buffer_load_dword v13, v12, s[24:27], s40 offen sc1")
    e("s_waitcnt vmcnt(0)")
    e("v_cmp_ne_u32 vcc, s74, v13")
    e("s_cbranch_vccz P2_GOT")
    e("s_add_u32 s32, s32, 1"); e(f"s_cmp_lt_u32 s32, {SPIN_MAX}"); e("s_cbranch_scc1 P2_POLL")
    em.lab("P2_GOT"); hstamp(em, 5)
    e("s_barrier")
    e("s_branch P2_W0")
    em.lab("P2_NOPOLL")
    tmpL = len(em.L); vm0 = em.vm
    for ks in range(min(NP, KSW)): issue_w(ks)
    pref_code = em.L[tmpL:]
    e("s_barrier")
    e("s_branch P2_JOIN")
    em.lab("P2_W0")
    em.L += pref_code
    em.lab("P2_JOIN")
    NREG = 64 // NW; NQ4 = NREG // 4
    e("v_and_b32 v3, 31, v0"); e("v_lshrrev_b32 v4, 5, v0")
    e("v_bfe_u32 v5, v3, 2, 1"); e("v_lshlrev_b32 v5, 4, v5"); e("v_lshrrev_b32 v6, 3, v3"); e("v_lshl_add_u32 v5, v6, 2, v5")
    e("v_and_b32 v6, 3, v3"); e("v_add_u32 v5, v5, v6")
    e("s_lshr_b32 s51, s3, 1"); e("s_and_b32 s46, s51, 1"); e("s_lshr_b32 s47, s51, 1")
    e("s_lshl_b32 s48, s38, 6"); e("s_lshl_b32 s46, s46, 5"); e("s_add_u32 s48, s48, s46"); e("v_add_u32 v5, s48, v5")
    e("s_lshl_b32 s49, s39, 6"); e("s_lshl_b32 s47, s47, 5"); e("s_add_u32 s49, s49, s47")
    e("s_and_b32 s52, s3, 1"); e("s_lshl_b32 s52, s52, 4"); e("s_add_u32 s49, s49, s52")
    e("v_lshlrev_b32 v6, 2, v4"); e("v_add_u32 v6, s49, v6")
    e("v_lshlrev_b32 v7, 3, v5"); e("v_lshlrev_b32 v8, 10, v5"); e("v_lshl_add_u32 v8, v6, 1, v8"); e("v_lshlrev_b32 v9, 1, v6")
    e("v_lshlrev_b32 v10, 11, v5"); e("v_lshl_add_u32 v10, v6, 2, v10")
    XS = EP; DS = EP+4; ST = EP+8; T = EP + 10; RES = EP + 16
    assert RES + 8 <= 256, RES
    for q in range(NQ4): em.vmem(f"buffer_load_dwordx2 {rng(XS+2*q,2)}, v8, s[8:11], 0 offen offset:{16*q}")
    for q in range(NQ4): em.vmem(f"buffer_load_dwordx2 {rng(DS+2*q,2)}, v9, s[28:31], 0 offen offset:{16*q}")
    dstamp(71)
    for ks in range(min(DA, KSW)): issue_a(ks)
    sq_ep = em.vmem(f"buffer_load_dwordx2 {rng(ST,2)}, v7, s[24:27], 0 offen offset:{O_ST} sc1")
    rq = [lambda: em.wait_vm(sq_ep), f"v_lshlrev_b32 v12, 16, v{ST}", f"v_and_b32 v13, 0xffff0000, v{ST}", "v_rcp_f32 v13, v13", "s_nop 0"]
    for q in range(NQ4):
        for d2 in range(2):
            xr = XS + 2*q + d2; dr = DS + 2*q + d2
            rq += [f"v_lshlrev_b32 v{T}, 16, v{xr}", f"v_and_b32 v{T+1}, 0xffff0000, v{xr}",
                f"v_sub_f32 v{T+2}, v{T}, v12", f"v_sub_f32 v{T+3}, v{T+1}, v12",
                f"v_cvt_pk_bf16_f32 v{T+2}, v{T+2}, v{T+3}", f"v_lshlrev_b32 v{T+3}, 16, v{T+2}", f"v_and_b32 v{T+2}, 0xffff0000, v{T+2}",
                f"v_mul_f32 v{T+3}, v{T+3}, v13", f"v_mul_f32 v{T+2}, v{T+2}, v13",
                f"v_cvt_pk_bf16_f32 v{T+2}, v{T+3}, v{T+2}", f"v_lshlrev_b32 v{T+3}, 16, v{T+2}", f"v_and_b32 v{T+2}, 0xffff0000, v{T+2}",
                f"v_lshlrev_b32 v{T+4}, 16, v{dr}", f"v_and_b32 v{T+5}, 0xffff0000, v{dr}",
                f"v_mul_f32 v{T+3}, v{T+3}, v{T+4}", f"v_mul_f32 v{T+2}, v{T+2}, v{T+5}",
                f"v_cvt_pk_bf16_f32 v{T+2}, v{T+3}, v{T+2}", f"v_lshlrev_b32 v{T+3}, 16, v{T+2}", f"v_and_b32 v{T+2}, 0xffff0000, v{T+2}",
                f"v_add_f32 v{RES+4*q+2*d2}, v{T+3}, v{T}", f"v_add_f32 v{RES+4*q+2*d2+1}, v{T+2}, v{T+1}"]
    for ks in range(KSW):
        em.wait_vm(max(wseq[ks], aseq[ks]))
        w = WP + (ks % NP)*8; a_ = AR + (ks % DA)*8
        for a in range(2):
            for b in range(2):
                c = "0" if ks == 0 else rng(acc(a,b),16)
                e(f"v_mfma_f32_32x32x16_bf16 {rng(acc(a,b),16)}, {rng(w+4*a,4)}, {rng(a_+4*b,4)}, {c}")
                if ks >= 3:
                    for _ in range(4):
                        if rq:
                            x = rq.pop(0); x() if callable(x) else e(x)
        if ks + NP < KSW: issue_w(ks + NP)
        if ks + DA < KSW: issue_a(ks + DA)
    while rq:
        x = rq.pop(0); x() if callable(x) else e(x)
    dstamp(72); hstamp(em, 6)
    e("s_nop 15")
    e(f"s_mul_i32 s50, s3, {NQ4*1024}"); e("v_add_u32 v11, s50, v2"); e("v_add_u32 v14, 65536, v11")
    for o in range(NW):
        base = ACC + o*NREG
        for r4 in range(NQ4):
            off = o*NW*NQ4*1024 + r4*1024
            em.lds(f"ds_write_b128 v{11 if off < 65536 else 14}, {rng(base+4*r4,4)} offset:{off % 65536}")
    e("s_waitcnt lgkmcnt(0)"); em.lg_done = em.lg
    e("s_barrier")
    e(f"s_mul_i32 s50, s3, {NW*NQ4*1024}"); e("v_add_u32 v11, s50, v2")
    RD = WP
    for w in range(NW):
        for r4 in range(NQ4): em.lds(f"ds_read_b128 {rng(RD+w*NREG+r4*4,4)}, v11 offset:{w*NQ4*1024 + r4*1024}")
    e("s_waitcnt lgkmcnt(0)"); em.lg_done = em.lg
    n = NW
    while n > 1:
        for w in range(n//2):
            for i in range(NREG): e(f"v_add_f32 v{RD+w*NREG+i}, v{RD+w*NREG+i}, v{RD+(w+n//2)*NREG+i}")
        n //= 2
    for i in range(NREG): e(f"v_add_f32 v{RD+i}, v{RD+i}, v{RES+i}")
    dstamp(73)
    for q in range(NQ4): em.vmem(f"buffer_store_dwordx4 {rng(RD+4*q,4)}, v10, s[16:19], 0 offen offset:{32*q}")
```

```python
from common import *
import os
U = 4096
SLAB = [0, 8*U, 16*U, 24*U]
MREG = 32*U
MISC = 38*U
L_NONCE = MISC
L_SEG = MISC + 64
L_RS = MISC + 64 + 2048
L_CSF = MISC + 64 + 2048 + 512
LDS_TOTAL = 40*U
MINI = MREG
def X_base(kb): return SLAB[kb % 4]
def S0_base(kb): return SLAB[kb % 4] + 4*U
def A0_base(kb): return SLAB[kb % 4] + 6*U
T1_base = [MREG, MREG+2*U, MREG+4*U, SLAB[0], SLAB[0]+2*U, SLAB[0]+4*U, SLAB[0]+6*U, SLAB[1]+4*U]
T4_base = [SLAB[1], SLAB[2], SLAB[2]+4*U, SLAB[3], SLAB[3]+4*U, MREG, SLAB[0], SLAB[0]+4*U]
HT_A = SLAB[1] + 4*U
HT_B = MREG + 4*U
O_ST, O_CS, O_E = 0, SZ_ST, SZ_ST + SZ_CS
O_DN = SZ_ST + SZ_CS + SZ_E
FUSED = int(os.environ.get('FUSED', '0'))
SC = ' sc0 sc1' if FUSED else ''
SPIN_MAX = 20000
env = lambda k, d: int(os.environ.get(k, str(d)))
PREF = env("PREF", 0); ROT = env("ROT", 0); VP2 = 26
HDBG = env("HDBG", 0)
CPF = env("CPF", 0)
NOTAG = env("NOTAG", 0)
ONLYST = env("ONLYST", 0)
FINE = env("FINE", 0)
NOBAR = env("NOBAR", 0)
NOCOMP = env("NOCOMP", 0); DQ_RATE = env("DQ_RATE", 1)
NF = {0: env("NF0", 8), 1: env("NF1", 5)}
MINI_AT = "B2"
SEG_BAR = "B8a"
WTF_BAR = "B8a"
GATHER_AT = os.environ.get("GATHER_AT", "B5")
PROC_AT = os.environ.get("PROC_AT", "B6")
NFI = env("NFI", 8)
DMA_SCHED = {"B0": [("stage", 2), ("stage", 3), ("mini", 0)], "B1": [("stage", 4)], "B2": [("stage", 5)],
             "B3": [("stage", 6), ("t1", 0), ("t1", 1), ("t1", 2)],
             "B4": [("stage", 7)], "B5": [("t1", 3), ("t1", 4), ("t1", 5), ("t1", 6)], "B6": [("t1", 7), ("t4", 0)], "B7": [("t4", 1), ("t4", 2)],
             "B8": [("t4", 3), ("t4", 4)], "B8a": [("t4", 5)], "B9": [("t4", 6), ("t4", 7)]}
if env("SCHED", 0) == 1:
    DMA_SCHED = {"B0": [("stage", 2), ("stage", 3), ("mini", 0)], "B1": [("stage", 4)], "B2": [("stage", 5)], "B3": [("stage", 6)],
             "B4": [("stage", 7)], "B5": [("t1", 0), ("t1", 1), ("t1", 2)], "B6": [("t1", 3), ("t1", 4), ("t1", 5), ("t1", 6)], "B7": [("t1", 7), ("t4", 0)],
             "B8": [("t4", 1), ("t4", 2), ("t4", 3), ("t4", 4)], "B8a": [("t4", 5)], "B9": [("t4", 6), ("t4", 7)]}
if env("SCHED", 0) == 2:
    DMA_SCHED = {"B0": [("stage", 2), ("stage", 3)], "B1": [("stage", 4), ("mini", 0)], "B2": [("stage", 5)], "B3": [("stage", 6)],
             "B4": [("stage", 7)], "B5": [("t1", 0), ("t1", 1), ("t1", 2)], "B6": [("t1", 3), ("t1", 4), ("t1", 5), ("t1", 6)], "B7": [("t1", 7), ("t4", 0)],
             "B8": [("t4", 1), ("t4", 2), ("t4", 3), ("t4", 4)], "B8a": [("t4", 5)], "B9": [("t4", 6), ("t4", 7)]}
    MINI_AT = "B3"
LOG2E = "0x3fb8aa3b"; NLOG2E = "0xbfb8aa3b"; INV2PI = "0x3e22f983"

def rng(r, n): return f"v[{r}:{r+n-1}]"

class Stream:
    def __init__(self, em):
        self.em = em; self.q = []; self.events = set()
    def add(self, items): self.q.extend(items)
    def signal(self, ev): self.events.add(ev)
    def _one(self):
        while self.q:
            it = self.q[0]
            if isinstance(it, tuple) and it[0] == "after":
                if it[1] in self.events: self.q.pop(0); continue
                return False
            if isinstance(it, tuple) and it[0] == "mark":
                self.q.pop(0); self.events.add("done:" + it[1]); continue
            self.q.pop(0)
            for x in (it if isinstance(it, list) else [it]):
                if callable(x): x(self.em)
                else: self.em.e(x)
            return True
        return False
    def fill(self, n):
        for _ in range(n):
            if not self._one(): break
    def flush_until(self, mark):
        while ("done:" + mark) not in self.events:
            if not self._one():
                if ("done:" + mark) in self.events: break
                raise RuntimeError(f"blocked flushing until {mark}: head {self.q[0] if self.q else None}")
    def flush(self):
        while self.q:
            if not self._one():
                if self.q: raise RuntimeError(f"blocked: {self.q[0]}")

VPI, VRS, VLANE16 = 16, 17, 27
VLRE, VLIM, VLDT = 1, 18, 19
VX0, VX1, VSB, VT2, VT4 = 20, 21, 22, 23, 24
VC1, VI2, VI2T = 20, 21, 22
VT1R = 25
VXR = 28; VXM = 28
VBR = 32
VT2A, VT2B, VT4A, VT4B = 36, 37, 38, 39
WR = 40
XF = 128
def xf(ks): return XF + 4*ks
STAG = 70
SKIP = [int(x) for x in os.environ.get("SKIP", "").split(",") if x]

def dma(em, srdreg, voff, soff_base, soff_add, m0_sreg, m0_add):
    if srdreg in SKIP: return max(em.vm - 1, 0)
    em.e(f"s_add_u32 m0, s{m0_sreg}, {m0_add}")
    if soff_base is None: em.e(f"s_mov_b32 s84, {soff_add}")
    else: em.e(f"s_add_u32 s84, s{soff_base}, {soff_add}")
    return em.vmem(f"buffer_load_dwordx4 v{voff}, s[{srdreg}:{srdreg+3}], s84 offen lds")
TA, TB = 36, 50
def ta(kb): return f"s{TA+kb}"
def tb(kb): return f"s{TB+kb}"
def dma_S0(em, kb, base=None): return dma(em, 12, VSB, None, ta(kb), 75, S0_base(kb) if base is None else base)
def dma_T2(em, kb, base, sreg): return dma(em, 16, VT2, sreg, tb(kb), 75, base)

slow_paths = []
def tagged_load(em, pre, insts, tagregs, label, maskpre=None):
    for p in pre: em.e(p)
    seqs = [em.vmem(i) for i in insts]
    def cmp_code():
        out = []
        for n, t in enumerate(tagregs):
            dst = "vcc" if n == 0 else "s[90:91]"
            out.append(f"v_cmp_ne_u32 {dst}, s{STAG}, v{t}")
            if maskpre is not None:
                out += maskpre(n)
                out.append(f"s_and_b64 {dst}, {dst}, s[92:93]")
            if n: out.append("s_or_b64 vcc, vcc, s[90:91]")
        return out
    def check(em2):
        em2.wait_vm(seqs[-1])
        if NOTAG: return
        for i in cmp_code(): em2.e(i)
        em2.e(f"s_cbranch_vccnz {label}_SLOW")
        em2.lab(f"{label}_OK")
        sp = [f"{label}_SLOW:", "    s_sleep 1"]
        sp += ["    " + i for i in pre] + ["    " + i for i in insts]
        sp.append("    s_waitcnt vmcnt(0)")
        sp += ["    " + i for i in cmp_code()]
        sp.append(f"    s_cbranch_vccz {label}_OK")
        sp.append("    s_add_u32 s32, s32, 1")
        sp.append(f"    s_cmp_lt_u32 s32, {SPIN_MAX}")
        sp.append(f"    s_cbranch_scc1 {label}_SLOW")
        sp.append(f"    s_branch {label}_OK")
        slow_paths.append("\n".join(sp))
    return check

def mini_dma_lines(C):
    L = []
    def e(x): L.append("    " + x)
    def d(*a):
        t = Em(); dma(t, *a); L.extend(t.L)
    e("s_cmp_eq_u32 s88, 0"); e(f"s_cbranch_scc1 K1_MINI0_{C}")
    e(f"s_mul_i32 s91, s89, {128*3584}")
    e("s_cmp_eq_u32 s88, 1"); e(f"s_cbranch_scc1 K1_MINI1_{C}")
    e("s_sub_u32 s90, s88, 2"); e("s_lshl_b32 s90, s90, 6"); e("s_add_u32 s90, s90, s81"); e("s_add_u32 s90, s90, s91")
    d(16, VT2, 90, 0, 75, MINI); d(16, VT2, 90, 64*3584, 75, MINI + 2*U)
    e(f"s_branch K1_MINIDONE_{C}")
    L.append(f"K1_MINI1_{C}:")
    e("s_add_u32 s90, s80, s91")
    d(16, VT2, 90, 0, 75, MINI); d(16, VT2, 90, 64*3584, 75, MINI + 2*U)
    e("s_add_u32 s90, s79, s91")
    e("v_lshrrev_b32 v2, 1, v0"); e("s_lshl_b32 s91, s4, 5"); e("v_add_u32 v2, s91, v2"); e("s_movk_i32 s91, 3584"); e("v_mul_lo_u32 v2, v2, s91")
    e("v_and_b32 v3, 1, v0"); e("v_lshl_add_u32 v2, v3, 4, v2")
    d(16, 2, 90, 0, 75, MINI + 4*U)
    e(f"s_branch K1_MINIDONE_{C}")
    L.append(f"K1_MINI0_{C}:")
    e("s_lshl_b32 s90, s89, 8")
    d(12, VSB, 90, 0, 75, MINI); d(12, VSB, 90, 128, 75, MINI + 2*U)
    L.append(f"K1_MINIDONE_{C}:")
    return L

def mini_compute(t2hi, bhi):
    L = []; a = L.append
    a("s_cmp_eq_u32 s88, 1"); a("s_cselect_b32 s90, 3, 2")
    a("s_cmp_ge_u32 s3, s90"); a("s_cbranch_scc1 K1_MCDONE")
    for i in range(4): a(f"v_mov_b32 v{2+i}, 0x3f803f80")
    a("s_cmp_eq_u32 s88, 0"); a("s_cbranch_scc1 K1_MC0")
    def mf(h):
        a("s_waitcnt lgkmcnt(0)")
        for k4 in range(4):
            c = "0" if (h == 0 and k4 == 0) else "v[112:127]"
            a(f"v_mfma_f32_32x32x16_bf16 v[112:127], v[2:5], v[{96+4*k4}:{99+4*k4}], {c}")
    a("s_cmp_eq_u32 s3, 2"); a("s_cbranch_scc1 K1_MC1N")
    a("s_lshl_b32 s90, s3, 5"); a(f"v_xor_b32 v6, s90, v{VT2A}"); a(f"v_add_u32 v6, {MINI - t2hi}, v6")
    for h in range(2):
        for k4 in range(4):
            o = h*2*U + k4*1024
            a(f"ds_read_b64_tr_b16 v[{96+4*k4}:{97+4*k4}], v6 offset:{o}")
            a(f"ds_read_b64_tr_b16 v[{98+4*k4}:{99+4*k4}], v6 offset:{o+256}")
        mf(h)
    a("s_branch K1_MCM")
    a("K1_MC1N:")
    a("v_bfe_u32 v6, v0, 4, 1"); a("v_lshlrev_b32 v6, 12, v6"); a("v_lshrrev_b32 v7, 5, v0"); a("v_bfe_u32 v8, v0, 2, 2"); a("v_lshl_add_u32 v7, v7, 3, v8")
    a("v_lshl_add_u32 v6, v7, 5, v6"); a("v_and_b32 v7, 3, v0"); a("v_lshl_add_u32 v6, v7, 3, v6"); a(f"v_add_u32 v6, {MINI + 4*U}, v6")
    for h in range(2):
        for k4 in range(4):
            o = (4*h + k4)*512
            a(f"ds_read_b64_tr_b16 v[{96+4*k4}:{97+4*k4}], v6 offset:{o}")
            a(f"ds_read_b64_tr_b16 v[{98+4*k4}:{99+4*k4}], v6 offset:{o+128}")
        mf(h)
    a("s_branch K1_MCM")
    a("K1_MC0:")
    a("s_lshl_b32 s90, s3, 12"); a(f"s_add_u32 s90, s90, {MINI - bhi}")
    for h in range(2):
        for k4 in range(4):
            a(f"v_add_u32 v6, s90, v{VBR + k4}")
            a(f"ds_read_b128 v[{96+4*k4}:{99+4*k4}], v6 offset:{h*2*U}")
        mf(h)
    a("K1_MCM:")
    a("s_nop 15"); a("s_nop 3")
    a("s_lshl_b32 s90, s88, 1"); a("s_add_u32 s90, s90, s3")
    a("s_cmp_eq_u32 s3, 2"); a("s_cselect_b32 s90, 8, s90")
    a("s_mul_i32 s91, s7, 9"); a("s_add_u32 s90, s90, s91"); a("s_lshl_b32 s90, s90, 10")
    a("s_lshr_b32 s91, s89, 1"); a("s_lshl_b32 s91, s91, 9"); a("s_add_u32 s90, s90, s91")
    a("s_and_b32 s91, s89, 1"); a("s_lshl_b32 s91, s91, 3"); a("s_add_u32 s90, s90, s91")
    a("v_mov_b32 v4, v112"); a(f"v_mov_b32 v5, s{STAG}")
    a(f"s_add_u32 s90, s90, {O_CS}")
    a("s_mov_b32 exec_hi, 0")
    a(f"buffer_store_dwordx2 v[4:5], v{VLANE16}, s[24:27], s90 offen sc0 sc1")
    a("s_mov_b64 exec, -1")
    a("K1_MCDONE:")
    return L

def side_job(R):
    ld = []; stl = []; a = ld.append
    hold = {}
    a("s_lshl_b32 s90, s6, 4"); a("s_add_u32 s90, s90, s7")
    a("s_mov_b32 s28, s60"); a("s_mov_b32 s29, s61"); a(f"s_mov_b32 s30, {F*D*2}"); a("s_mov_b32 s31, 0x00020000")
    a("v_and_b32 v2, 31, v0"); a("v_lshrrev_b32 v3, 5, v0"); a("v_lshlrev_b32 v4, 12, v3"); a("v_lshl_add_u32 v4, v2, 1, v4")
    for n, sdst in ((0, 33), (1, 87)):
        a("s_lshl_b32 s91, s4, 1"); a(f"s_add_u32 s91, s91, {n}"); a("s_min_u32 s91, s91, 6")
        a("s_mul_i32 s92, s90, 7"); a("s_add_u32 s92, s92, s91")
        a("s_mov_b32 s93, 38347923"); a("s_mul_hi_u32 s93, s92, s93")
        a("s_mul_i32 s94, s93, 112"); a("s_sub_u32 s94, s92, s94")
        a("s_lshl_b32 s95, s94, 14"); a("s_lshl_b32 s91, s93, 6"); a("s_add_u32 s95, s95, s91")
        for j in range(8):
            ro = (8*(j>>2) + (j&3))*1024
            if ro > 4095:
                a(f"s_add_u32 s91, s95, {ro & ~4095}")
                a(lambda em_, j=j, ro=ro, n=n: em_.vmem(f"buffer_load_ushort v{R+8*n+j}, v4, s[28:31], s91 offen offset:{ro & 4095}"))
            else:
                a(lambda em_, j=j, ro=ro, n=n: em_.vmem(f"buffer_load_ushort v{R+8*n+j}, v4, s[28:31], s95 offen offset:{ro}"))
        a(f"s_mul_i32 s{sdst}, s93, {NKS}"); a(f"s_add_u32 s{sdst}, s{sdst}, s94"); a(f"s_add_u32 s{sdst}, s{sdst}, 64"); a(f"s_lshl_b32 s{sdst}, s{sdst}, 10")
    a("s_lshl_b32 s93, s90, 2"); a("s_add_u32 s93, s93, s4"); a("s_lshr_b32 s94, s93, 6"); a("s_and_b32 s95, s93, 63")
    a("v_lshlrev_b32 v4, 10, v2"); a("v_lshl_add_u32 v4, v3, 3, v4")
    a("s_lshl_b32 s91, s94, 15"); a("s_lshl_b32 s90, s95, 4"); a("s_add_u32 s91, s91, s90")
    a("s_mov_b32 s28, s46"); a("s_mov_b32 s29, s47"); a(f"s_mov_b32 s30, {D*P*2}")
    a(lambda em_: em_.vmem(f"buffer_load_dwordx2 {rng(R+16,2)}, v4, s[28:31], s91 offen"))
    a("s_mov_b32 s28, s48"); a("s_mov_b32 s29, s49")
    a(lambda em_: hold.__setitem__("sq", em_.vmem(f"buffer_load_dwordx2 {rng(R+18,2)}, v4, s[28:31], s91 offen")))
    a(f"s_mul_i32 s85, s94, {NKS}"); a("s_add_u32 s85, s85, s95"); a("s_lshl_b32 s85, s85, 10")
    b = stl.append
    b(lambda em_: em_.wait_vm(hold["sq"]))
    b([f"s_add_u32 s28, s66, {OFF_WT}", "s_addc_u32 s29, s67, 0"])
    b(f"s_mov_b32 s30, {SZ_WT}")
    for n, sdst in ((0, 33), (1, 87)):
        for j in range(4): b(f"v_lshl_or_b32 v{R+8*n+j}, v{R+8*n+1+2*j}, 16, v{R+8*n+2*j}")
        b(lambda em_, n=n, sdst=sdst: em_.vmem(f"buffer_store_dwordx4 {rng(R+8*n,4)}, v{VLANE16}, s[28:31], s{sdst} offen{SC}"))
    b("s_mov_b32 s90, 0x05040100"); b("s_mov_b32 s91, 0x07060302")
    b(f"v_perm_b32 v{R+4}, v{R+18}, v{R+16}, s90"); b(f"v_perm_b32 v{R+5}, v{R+18}, v{R+16}, s91")
    b(f"v_perm_b32 v{R+6}, v{R+19}, v{R+17}, s90"); b(f"v_perm_b32 v{R+7}, v{R+19}, v{R+17}, s91")
    b(lambda em_: em_.vmem(f"buffer_store_dwordx4 {rng(R+4,4)}, v{VLANE16}, s[28:31], s85 offen{SC}"))
    b("s_nop 1")
    return ld, stl


def hstamp(em, idx):
    if not HDBG: return
    L = f"HS{idx}_{id(em)%9973}"
    em.e("s_cmp_lg_u32 s2, 37"); em.e(f"s_cbranch_scc1 {L}")
    em.e("s_cmp_lg_u32 s3, 0"); em.e(f"s_cbranch_scc1 {L}")
    em.e("s_memrealtime s[34:35]"); em.e("s_waitcnt lgkmcnt(0)")
    em.e(f"s_mov_b32 s{HREG[idx]}, s34")
    em.lab(L)
HREG = {1: 96, 2: 97, 3: 98, 4: 99, 5: 100, 6: 101, 7: 33}

def gen_k1(name="k1_kernel"):
    slow_paths.clear()
    top = Em(); e = top.e
    top.L.append(f".globl {name}\n.p2align 8\n.type {name},@function\n{name}:")
    e("s_cmp_ge_u32 s2, 256"); e("s_cbranch_scc1 K1_END")
    if DIAG: e("s_memrealtime s[96:97]"); e("s_memtime s[98:99]")
    e("s_mov_b32 s32, 0")
    e("s_load_dwordx16 s[36:51], s[0:1], 0"); e("s_load_dwordx16 s[52:67], s[0:1], 64")
    if CPF:
        e("s_getpc_b64 s[90:91]")
        top.lab("K1_PC")
        e("v_lshrrev_b32 v2, 6, v0"); e("s_lshr_b32 s92, s2, 3"); e("s_lshl_b32 s92, s92, 3"); e("v_add_u32 v2, s92, v2")
        e("v_lshlrev_b32 v2, 8, v2"); e("v_and_b32 v3, 63, v0"); e("v_lshl_add_u32 v2, v3, 2, v2")
        e("s_mov_b32 s92, K1_CODE_END-K1_PC-4"); e("v_min_u32 v2, s92, v2")
        e("global_load_dword v126, v2, s[90:91]")
    e("v_lshrrev_b32 v1, 6, v0"); e("v_and_b32 v0, 63, v0"); e("s_nop 0"); e("v_readfirstlane_b32 s3, v1")
    e("s_and_b32 s72, s2, 7"); e("s_lshr_b32 s73, s2, 3")
    e("s_lshr_b32 s6, s72, 1"); e("s_lshl_b32 s6, s6, 2"); e("s_lshr_b32 s74, s73, 3"); e("s_add_u32 s6, s6, s74")
    e("s_and_b32 s7, s72, 1"); e("s_lshl_b32 s7, s7, 3"); e("s_and_b32 s74, s73, 7"); e("s_add_u32 s7, s7, s74")
    e("s_and_b32 s4, s3, 3"); e("s_lshr_b32 s5, s3, 2")
    e("s_lshl_b32 s75, s3, 10"); e("s_lshl_b32 s76, s3, 11")
    e("s_lshl_b32 s77, s5, 13"); e("s_lshl_b32 s74, s4, 11"); e("s_add_u32 s77, s77, s74")
    e("s_lshl_b32 s78, s6, 17")
    e("s_lshr_b32 s74, s7, 2"); e("s_mul_i32 s74, s74, 896"); e("s_and_b32 s83, s7, 3")
    def sel4(dst, vals):
        e(f"s_mov_b32 s{dst}, {vals[0]}")
        for q in (1, 2, 3):
            e(f"s_cmp_eq_u32 s83, {q}"); e(f"s_cselect_b32 s{dst}, {vals[q]}, s{dst}")
        e(f"s_add_u32 s{dst}, s{dst}, s74")
    sel4(80, (128, 384, 448, 704)); sel4(81, (0, 256, 512, 768)); sel4(82, (192, 192, 640, 640)); sel4(79, (192, 224, 640, 672))
    e("v_lshrrev_b32 v2, 3, v0"); e("v_and_b32 v3, 7, v0"); e("v_lshrrev_b32 v4, 1, v2"); e("v_xor_b32 v5, v3, v4")
    e("s_lshl_b32 s74, s3, 14")
    e("v_lshlrev_b32 v6, 10, v2"); e("v_lshl_add_u32 v6, v5, 4, v6"); e(f"v_add_u32 v{VX0}, s74, v6")
    e("v_xor_b32 v7, 4, v5"); e("v_lshlrev_b32 v8, 10, v2"); e("v_lshl_add_u32 v8, v7, 4, v8")
    e("s_add_u32 s83, s74, 8192"); e(f"v_add_u32 v{VX1}, s83, v8")
    e("s_and_b32 s74, s4, 1"); e("s_lshl_b32 s74, s74, 2"); e("v_xor_b32 v7, s74, v5")
    e("v_lshlrev_b32 v8, 10, v2"); e("v_lshl_add_u32 v8, v7, 4, v8")
    e("s_lshl_b32 s74, s7, 15"); e("s_lshl_b32 s83, s4, 13"); e("s_add_u32 s74, s74, s83"); e(f"v_add_u32 v{VSB}, s74, v8")
    e("v_lshrrev_b32 v6, 2, v0"); e("s_lshl_b32 s74, s4, 4"); e("v_add_u32 v6, s74, v6")
    e("s_movk_i32 s83, 3584"); e("v_mul_lo_u32 v6, v6, s83")
    e("v_and_b32 v7, 3, v0"); e("s_lshl_b32 s74, s5, 1"); e("v_xor_b32 v7, s74, v7"); e(f"v_lshl_add_u32 v{VT2}, v7, 4, v6")
    e("v_bfe_u32 v6, v2, 1, 1"); e("s_lshl_b32 s74, s5, 1"); e("v_or_b32 v6, s74, v6"); e("v_lshlrev_b32 v6, 1, v6"); e("v_xor_b32 v6, v3, v6")
    e("s_lshl_b32 s74, s4, 4"); e("v_add_u32 v7, s74, v2"); e("v_mul_lo_u32 v7, v7, s83"); e(f"v_lshl_add_u32 v{VT4}, v6, 4, v7")
    e(f"v_lshlrev_b32 v{VLANE16}, 4, v0")
    e("s_waitcnt lgkmcnt(0)")
    hstamp(top, 1)
    srd(top, 8, 36, 37, NROW*D*2)
    e("s_cmp_eq_u32 s5, 0")
    e("s_cselect_b32 s12, s42, s44"); e("s_cselect_b32 s13, s43, s45")
    e(f"s_mov_b32 s14, {P*D*2}"); e("s_mov_b32 s15, 0x00020000")
    e("s_cselect_b32 s16, s56, s58"); e("s_cselect_b32 s17, s57, s59")
    e(f"s_mov_b32 s18, {D*F*2}"); e("s_mov_b32 s19, 0x00020000")
    srd(top, 20, 66, 67, SZ_ACT, OFF_ACT)
    srd(top, 24, 66, 67, SZ_ST+SZ_CS+SZ_E+SZ_DN, OFF_ST)
    if DIAG: e("s_memtime s[34:35]"); e("s_waitcnt lgkmcnt(0)"); e("s_sub_u32 s95, s34, s98")
    e("s_cmp_lg_u32 s2, 0"); e("s_cbranch_scc1 K1_NONONCE")
    e("s_cmp_lg_u32 s3, 0"); e("s_cbranch_scc1 K1_NONONCE")
    e("s_memrealtime s[86:87]"); e("s_waitcnt lgkmcnt(0)"); e("s_or_b32 s86, s86, 1")
    e("v_mov_b32 v6, s86"); e("v_mov_b32 v7, 0"); e("s_mov_b64 exec, 1")
    e("global_store_dword v7, v6, s[64:65] sc0 sc1"); e("s_mov_b64 exec, -1")
    top.lab("K1_NONONCE")
    e("s_cmp_lg_u32 s3, 7"); e("s_cbranch_scc1 K1_NOPOLL")
    e("v_mov_b32 v7, 0"); e("global_load_dword v12, v7, s[64:65] sc1")
    top.lab("K1_NOPOLL")
    e("s_lshr_b32 s88, s6, 2"); e("s_and_b32 s89, s6, 3")
    e("s_lshl_b32 s90, s7, 3"); e("s_add_u32 s90, s90, s3"); e("s_lshl_b32 s90, s90, 10"); e("s_add_u32 s90, s90, s78")
    VST = 48; VNON = 12
    top.vmem(f"buffer_load_dwordx4 {rng(VST,4)}, v{VLANE16}, s[8:11], s90 offen")
    sq_stage = {}
    def stage_now(kb):
        dma(top, 8, VX0, 78, ta(kb), 76, X_base(kb)); dma(top, 8, VX1, 78, ta(kb), 76, X_base(kb) + 1024)
        dma_S0(top, kb); return dma_T2(top, kb, A0_base(kb), 80)
    e("s_mov_b32 s28, s38"); e("s_mov_b32 s29, s39"); e(f"s_mov_b32 s30, {P*2}"); e("s_mov_b32 s31, 0x00020000")
    e("v_and_b32 v6, 31, v0"); e("s_lshl_b32 s90, s7, 6"); e("v_lshl_add_u32 v6, v6, 1, s90")
    top.vmem(f"buffer_load_ushort v{VLRE}, v6, s[28:31], 0 offen")
    e("s_mov_b32 s28, s40"); e("s_mov_b32 s29, s41")
    top.vmem(f"buffer_load_ushort v{VLIM}, v6, s[28:31], 0 offen")
    e("s_mov_b32 s28, s50"); e("s_mov_b32 s29, s51")
    sq_lam = top.vmem(f"buffer_load_ushort v{VLDT}, v6, s[28:31], 0 offen")
    if ROT:
        e("s_lshr_b32 s90, s73, 3"); e("s_lshl_b32 s90, s90, 1"); e("s_add_u32 s90, s90, s73")
    else:
        e("s_mov_b32 s90, 0")
    for kb in range(8):
        e(f"s_add_u32 s91, s90, {kb}"); e("s_and_b32 s91, s91, 7"); e(f"s_lshl_b32 s{TA+kb}, s91, 7"); e(f"s_mul_i32 s{TB+kb}, s91, {64*3584}")
    sq_stage[0] = stage_now(0); sq_stage[1] = stage_now(1)
    if PREF:
        e("s_cmp_lt_u32 s3, 2"); e("s_cselect_b32 s28, s36, s56"); e("s_cselect_b32 s29, s37, s57"); e(f"s_mov_b32 s30, {D*F*2}"); e(f"s_cselect_b32 s30, {NROW*D*2}, s30")
        e("s_cmp_eq_u32 s3, 2"); e("s_cselect_b32 s28, s42, s28"); e("s_cselect_b32 s29, s43, s29"); e(f"s_cselect_b32 s30, {P*D*2}, s30")
        e("s_cmp_eq_u32 s3, 3"); e("s_cselect_b32 s28, s44, s28"); e("s_cselect_b32 s29, s45, s29"); e(f"s_cselect_b32 s30, {P*D*2}, s30")
        e("s_cmp_ge_u32 s3, 6"); e("s_cselect_b32 s28, s58, s28"); e("s_cselect_b32 s29, s59, s29")
        e("s_mov_b32 s31, 0x00020000")
        e("v_lshrrev_b32 v2, 2, v0"); e("v_and_b32 v3, 3, v0")
        e("s_cmp_ge_u32 s3, 4"); e("s_cbranch_scc1 K1_PFW")
        e("v_min_u32 v2, 7, v2")
        e("s_lshr_b32 s90, s72, 1"); e("s_lshl_b32 s90, s90, 9"); e("s_lshl_b32 s91, s73, 4"); e("s_add_u32 s90, s90, s91")
        e("s_and_b32 s91, s3, 1"); e("s_lshl_b32 s91, s91, 3"); e("s_add_u32 s90, s90, s91")
        e("s_and_b32 s91, s72, 1"); e("s_lshl_b32 s91, s91, 8"); e("s_lshl_b32 s92, s73, 3"); e("s_add_u32 s91, s91, s92")
        e("s_cmp_lt_u32 s3, 2"); e("s_cselect_b32 s90, s90, s91")
        e("v_add_u32 v2, s90, v2"); e("v_lshlrev_b32 v2, 10, v2"); e("v_lshl_add_u32 v2, v3, 5, v2")
        e("s_movk_i32 s33, 128")
        e("s_branch K1_PFGO")
        top.lab("K1_PFW")
        e("v_min_u32 v2, 5, v2")
        e("v_cmp_lt_u32 vcc, 2, v2"); e("v_lshlrev_b32 v2, 1, v2"); e("v_addc_co_u32 v2, vcc, 1, v2, vcc")
        e("s_and_b32 s91, s72, 1"); e("s_mul_i32 s91, s91, 14"); e("v_add_u32 v2, s91, v2"); e("v_lshlrev_b32 v2, 7, v2"); e("v_lshl_add_u32 v2, v3, 5, v2")
        e("s_lshl_b32 s90, s73, 1"); e("s_and_b32 s91, s3, 1"); e("s_add_u32 s90, s90, s91"); e("s_mul_i32 s90, s90, 3584"); e("v_add_u32 v2, s90, v2")
        e(f"s_mov_b32 s33, {64*3584}")
        top.lab("K1_PFGO")
        for kb in range(2, 8):
            e(f"s_mul_i32 s90, s33, {kb}")
            top.vmem("buffer_load_dword v127, v2, s[28:31], s90 offen")
        e("v_bfe_u32 v2, v0, 2, 2"); e("s_lshr_b32 s90, s4, 1"); e("s_lshl_b32 s91, s90, 2"); e("v_add_u32 v2, s91, v2"); e("v_lshlrev_b32 v2, 1, v2")
        e("v_subrev_u32 v2, s90, v2")
        e("s_and_b32 s91, s72, 1"); e("s_mul_i32 s91, s91, 14"); e("v_add_u32 v2, s91, v2"); e("v_lshlrev_b32 v2, 7, v2"); e("v_lshl_add_u32 v2, v3, 5, v2")
        e("v_lshrrev_b32 v3, 4, v0"); e(f"s_mov_b32 s90, {64*3584}"); e("v_mul_lo_u32 v3, v3, s90"); e("v_add_u32 v2, v2, v3")
        e("s_lshl_b32 s90, s73, 1"); e("s_and_b32 s91, s4, 1"); e("s_add_u32 s90, s90, s91"); e("s_mul_i32 s90, s90, 3584"); e(f"v_add_u32 v{VP2}, s90, v2")
        if PREF == 2:
            top.vmem(f"buffer_load_dword v127, v{VP2}, s[16:19], 0 offen")
            e(f"s_mov_b32 s90, {256*3584}")
            top.vmem(f"buffer_load_dword v127, v{VP2}, s[16:19], s90 offen")
    e("v_and_b32 v2, 31, v0"); e("v_lshrrev_b32 v3, 5, v0")
    e("v_bfe_u32 v4, v2, 2, 1"); e("v_lshlrev_b32 v4, 4, v4")
    e("v_lshrrev_b32 v5, 3, v2"); e("v_lshl_add_u32 v4, v5, 2, v4")
    e("v_and_b32 v5, 3, v2"); e(f"v_add_u32 v{VPI}, v4, v5")
    e(f"v_bfe_u32 v5, v{VPI}, 1, 3"); e("v_xor_b32 v5, v3, v5")
    e(f"v_lshlrev_b32 v6, 7, v{VPI}"); e("v_lshl_add_u32 v6, v5, 4, v6")
    e("s_lshl_b32 s90, s4, 12"); e("v_add_u32 v6, s90, v6")
    for s4 in range(4): e(f"v_xor_b32 v{VXR+s4}, {32*s4}, v6")
    e("v_bfe_u32 v2, v0, 4, 1"); e("v_lshrrev_b32 v3, 5, v0"); e("v_bfe_u32 v4, v0, 2, 2"); e("v_and_b32 v5, 3, v0")
    e("v_lshl_add_u32 v6, v3, 3, v4")
    e("v_lshlrev_b32 v7, 6, v6"); e("v_lshl_add_u32 v7, v5, 3, v7"); e("v_lshl_add_u32 v7, v2, 12, v7")
    e(f"v_lshl_add_u32 v{VT2A}, v2, 5, v7"); e(f"v_xor_b32 v{VT2B}, 32, v{VT2A}")
    e("s_and_b32 s90, s7, 1"); e("s_lshl_b32 s90, s90, 5"); e(f"v_xor_b32 v{VT1R}, s90, v{VT2A}")
    e("v_lshlrev_b32 v7, 7, v6"); e("v_lshl_add_u32 v7, v5, 3, v7"); e("v_lshl_add_u32 v7, v2, 13, v7")
    e("v_bfe_u32 v8, v4, 1, 1"); e("v_lshl_or_b32 v8, v2, 1, v8"); e("v_lshl_add_u32 v7, v8, 5, v7")
    e("s_lshl_b32 s90, s5, 6"); e(f"v_xor_b32 v{VT4A}, s90, v7"); e(f"v_xor_b32 v{VT4B}, 32, v{VT4A}")
    e("v_and_b32 v2, 31, v0"); e("v_lshrrev_b32 v3, 5, v0")
    e("v_bfe_u32 v5, v2, 1, 3"); e("v_xor_b32 v5, v3, v5")
    e("v_lshlrev_b32 v6, 7, v2"); e("v_lshl_add_u32 v6, v5, 4, v6")
    for s4 in range(4): e(f"v_xor_b32 v{VBR+s4}, {32*s4}, v6")
    top.wait_vm(0)
    if DIAG: e("s_memtime s[34:35]"); e("s_waitcnt lgkmcnt(0)"); e("s_sub_u32 s94, s34, s98")
    e("s_mov_b32 s90, 0x3f803f80"); e("v_mov_b32 v2, 0"); e("v_mov_b32 v3, 0")
    for i in range(4):
        e(f"v_dot2_f32_bf16 v2, v{VST+i}, s90, v2"); e(f"v_dot2_f32_bf16 v3, v{VST+i}, v{VST+i}, v3")
    e("s_nop 2")
    for dpp in ("row_shr:1", "row_shr:2", "row_shr:4", "row_shr:8", "row_bcast:15 row_mask:0xa", "row_bcast:31 row_mask:0xc"):
        rm = "" if "row_mask" in dpp else " row_mask:0xf"
        e(f"v_add_f32_dpp v2, v2, v2 {dpp}{rm} bank_mask:0xf"); e(f"v_add_f32_dpp v3, v3, v3 {dpp}{rm} bank_mask:0xf"); e("s_nop 1")
    e("v_mul_f32 v2, 0x3b000000, v2"); e("v_mul_f32 v3, 0x3b000000, v3"); e("v_fma_f32 v3, -v2, v2, v3"); e("v_max_f32 v3, 0, v3")
    e("v_cvt_pk_bf16_f32 v4, v2, v3"); e("v_and_b32 v5, 0xffff0000, v4"); e("v_add_f32 v5, 0x3727c5ac, v5")
    e("v_cvt_pk_bf16_f32 v5, v5, v5"); e("v_lshlrev_b32 v5, 16, v5"); e("v_sqrt_f32 v5, v5"); e("s_nop 0")
    e("v_cvt_pk_bf16_f32 v8, v2, v5")
    e("s_cmp_lg_u32 s3, 7"); e("s_cbranch_scc1 K1_NN2")
    top.lab("K1_NLOOP")
    e(f"v_readfirstlane_b32 s{STAG}, v{VNON}"); e(f"s_cmp_lg_u32 s{STAG}, 0"); e("s_cbranch_scc1 K1_NGOT")
    e("v_mov_b32 v7, 0"); e(f"global_load_dword v{VNON}, v7, s[64:65] sc1"); e("s_waitcnt vmcnt(0)")
    e("s_add_u32 s32, s32, 1"); e(f"s_cmp_lt_u32 s32, {SPIN_MAX}"); e("s_cbranch_scc1 K1_NLOOP")
    top.lab("K1_NGOT")
    e(f"v_mov_b32 v7, {L_NONCE}"); e(f"ds_write_b32 v7, v{VNON}"); e("s_waitcnt lgkmcnt(0)")
    top.lab("K1_NN2")
    top.wait_vm(sq_stage[0])
    e("s_barrier")
    hstamp(top, 2)
    if DIAG: e("s_memtime s[34:35]"); e("s_waitcnt lgkmcnt(0)"); e("s_sub_u32 s100, s34, s98"); e("s_mov_b32 s101, 0")
    e(f"v_mov_b32 v7, {L_NONCE}"); e("ds_read_b32 v6, v7"); e("s_waitcnt lgkmcnt(0)"); e(f"v_readfirstlane_b32 s{STAG}, v6")
    e("s_lshl_b32 s90, s6, 7"); e("s_lshl_b32 s91, s7, 3"); e("s_add_u32 s90, s90, s91"); e("s_add_u32 s90, s90, s3"); e("s_lshl_b32 s90, s90, 3")
    e(f"v_mov_b32 v9, s{STAG}"); e("v_mov_b32 v7, 0")
    e("s_mov_b32 exec_lo, 0"); e("s_brev_b32 exec_hi, 1")
    top.vmem(f"buffer_store_dwordx2 v[8:9], v7, s[24:27], s90 offen offset:{O_ST} sc0 sc1")
    e("s_mov_b64 exec, -1")
    e("s_cmp_lg_u32 s5, 0"); e("s_cbranch_scc1 K1_CH1")
    texts = [top.text()]
    for ch in range(2): texts.append(gen_ch(ch, top, sq_stage, sq_lam))
    tail = Em(); tail.lab("K1_FIN")
    if FUSED:
        if env('P2H', 1): from k2h import gen_part2
        else: from k2f import gen_part2
        gen_part2(tail)
    if DIAG:
        e = tail.e
        e("s_waitcnt vmcnt(0)")
        e("s_memrealtime s[86:87]"); e("s_memtime s[88:89]"); e("s_waitcnt lgkmcnt(0)")
        e("s_cmp_lg_u32 s3, 0"); e("s_cbranch_scc1 K1_END")
        e("v_mov_b32 v20, s96"); e("v_mov_b32 v21, s86"); e("s_sub_u32 s88, s88, s98"); e("v_mov_b32 v22, s88"); e("v_mov_b32 v23, 0")
        if FUSED:
            e("v_mov_b32 v28, s70"); e("v_mov_b32 v29, s71"); e("v_mov_b32 v30, s72"); e("v_mov_b32 v31, s73")
        e("s_lshl_b32 s50, s2, 5"); e(f"s_add_u32 s50, s50, {OFF_TS}"); e("v_mov_b32 v24, s50")
        e("s_mov_b64 exec, 1"); e("global_store_dwordx4 v24, v[20:23], s[66:67]")
        if FUSED: e("global_store_dwordx4 v24, v[28:31], s[66:67] offset:16")
    if HDBG:
        e = tail.e
        e("s_waitcnt vmcnt(0)")
        hstamp(tail, 7)
        e("s_cmp_lg_u32 s2, 37"); e("s_cbranch_scc1 K1_END"); e("s_cmp_lg_u32 s3, 0"); e("s_cbranch_scc1 K1_END")
        for i in range(2, 8):
            e(f"s_sub_u32 s34, s{HREG[i]}, s96"); e(f"v_mov_b32 v{20+i}, s34")
        e("v_mov_b32 v20, 0"); e("s_mov_b64 exec, 1")
        e("global_store_dwordx4 v20, v[22:25], s[64:65] offset:16"); e("global_store_dwordx2 v20, v[26:27], s[64:65] offset:32")
    tail.lab("K1_END"); tail.e("s_endpgm")
    return "".join(texts) + tail.text() + "\n".join(slow_paths) + "\nK1_CODE_END:\n    s_endpgm\n", kd(name, 256), LDS_TOTAL

from k1b_ch import gen_ch
```

```python
from common import *
import os
env = lambda k, d: int(os.environ.get(k, str(d)))
U = 4096
XB = [0, 24576, 49152]
WB = [73728 + 16384*s for s in range(5)]
MISC = 155648
L_NONCE = MISC; L_SEG = MISC + 64; L_RS = MISC + 64 + 2048; L_CSF = MISC + 64 + 2048 + 512
LDS_TOTAL = 163840
MINI = XB[2]
HT_A = XB[0]
O_ST, O_CS, O_E = 0, SZ_ST, SZ_ST + SZ_CS
O_DN = SZ_ST + SZ_CS + SZ_E
SPIN_MAX = 20000
NOCOMP = env("NOCOMP", 0); NOFILL = env("NOFILL", 0); ROT = env("ROT", 1); NOTAG = env("NOTAG", 0); HDBG = env("HDBG", 0); DQ_RATE = env("DQ_RATE", 1)
NF = {0: env("NF0", 4), 1: env("NF1", 3)}
SC = " sc0 sc1"
LOG2E = "0x3fb8aa3b"; NLOG2E = "0xbfb8aa3b"; INV2PI = "0x3e22f983"
def rng(r, n): return f"v[{r}:{r+n-1}]"
from k1b import Stream
VPI, VRS, VLANE16 = 16, 17, 25
VLRE, VLIM, VLDT = 1, 18, 19
VX0, VX1, VSB, VT2, VT4 = 20, 21, 22, 23, 24
VC1, VI2 = 26, 27
VXR = 28; VXM = 28
VP = 32
XRING = 38; NXR = 2
WR = 46; NR = 6
ACC0 = 72
WP = 176; NP = 10
STAG = 70
TA, TB = 36, 50
def ta(kb): return f"s{TA+kb}"
def tb(kb): return f"s{TB+kb}"
def dma(em, srdreg, voff, soff_base, soff_add, m0_sreg, m0_add, extra=0):
    em.e(f"s_add_u32 m0, s{m0_sreg}, {m0_add}")
    if soff_base is None: em.e(f"s_mov_b32 s84, {soff_add}")
    else: em.e(f"s_add_u32 s84, s{soff_base}, {soff_add}")
    if extra: em.e(f"s_add_u32 s84, s84, {extra}")
    return em.vmem(f"buffer_load_dwordx4 v{voff}, s[{srdreg}:{srdreg+3}], s84 offen lds")
def xb_items(em, j, out):
    b = XB[j % 3]
    return [lambda: dma(em, 8, VX0, 78, ta(j), 76, b), lambda: dma(em, 8, VX1, 78, ta(j), 76, b + 1024),
            lambda: out.__setitem__(("xb", j), dma(em, 12, VSB, None, ta(j), 75, b + 16384))]
def w_items(em, i, out):
    b = WB[i % 5]; ex = (i & 1)*32*3584
    return [lambda: dma(em, 16, VT2, 83, tb(i >> 1), 77, b, ex),
            lambda: out.__setitem__(("w", i), dma(em, 16, VT4, 81, tb(i >> 1), 75, b + 4096, ex))]
slow_paths = []
def tagged_load(em, pre, insts, tagregs, label):
    for p in pre: em.e(p)
    seqs = [em.vmem(i) for i in insts]
    def cmp_code():
        out = []
        for n, t in enumerate(tagregs):
            dst = "vcc" if n == 0 else "s[90:91]"
            out.append(f"v_cmp_ne_u32 {dst}, s{STAG}, v{t}")
            if n: out.append("s_or_b64 vcc, vcc, s[90:91]")
        return out
    def check(em2):
        em2.wait_vm(seqs[-1])
        if NOTAG: return
        for i in cmp_code(): em2.e(i)
        em2.e(f"s_cbranch_vccnz {label}_SLOW"); em2.lab(f"{label}_OK")
        sp = [f"{label}_SLOW:", "    s_sleep 1"] + ["    " + i for i in pre] + ["    " + i for i in insts] + ["    s_waitcnt vmcnt(0)"]
        sp += ["    " + i for i in cmp_code()]
        sp += [f"    s_cbranch_vccz {label}_OK", "    s_add_u32 s32, s32, 1", f"    s_cmp_lt_u32 s32, {SPIN_MAX}", f"    s_cbranch_scc1 {label}_SLOW", f"    s_branch {label}_OK"]
        slow_paths.append("\n".join(sp))
    return check
HREG = {1: 96, 2: 97, 3: 98, 4: 99, 5: 100, 6: 101, 7: 33}
def hstamp(em, idx):
    if not HDBG: return
    L = f"HS{idx}_{len(slow_paths)}_{len(em.L)}"
    em.e("s_cmp_lg_u32 s2, 37"); em.e(f"s_cbranch_scc1 {L}"); em.e("s_cmp_lg_u32 s3, 0"); em.e(f"s_cbranch_scc1 {L}")
    em.e("s_memrealtime s[34:35]"); em.e("s_waitcnt lgkmcnt(0)"); em.e(f"s_mov_b32 s{HREG[idx]}, s34"); em.lab(L)

def mini_dma_lines(C):
    L = []
    def e(x): L.append("    " + x)
    def d(*a, **k):
        t = Em(); dma(t, *a, **k); L.extend(t.L)
    e("s_cmp_eq_u32 s88, 0"); e(f"s_cbranch_scc1 K1_MINI0_{C}")
    e(f"s_mul_i32 s91, s89, {128*3584}")
    e("s_sub_u32 s90, s88, 2"); e("s_lshl_b32 s90, s90, 6"); e("s_add_u32 s90, s90, s81")
    e("s_cmp_eq_u32 s88, 1"); e("s_cselect_b32 s90, s80, s90"); e("s_add_u32 s90, s90, s91")
    e("s_lshr_b32 s92, s4, 1"); e(f"s_mul_i32 s93, s92, {32*3584}"); e("s_add_u32 s90, s90, s93")
    e("s_lshl_b32 s92, s92, 12"); e("s_lshl_b32 s93, s5, 11"); e("s_add_u32 s92, s92, s93"); e("s_and_b32 s93, s4, 1"); e("s_lshl_b32 s93, s93, 10"); e("s_add_u32 s92, s92, s93")
    d(16, VT2, 90, 0, 92, MINI); d(16, VT2, 90, 64*3584, 92, MINI + 8192)
    e("s_cmp_lg_u32 s88, 1"); e(f"s_cbranch_scc1 K1_MINIDONE_{C}")
    e("s_add_u32 s90, s79, s91")
    e("v_lshrrev_b32 v2, 1, v0"); e("s_lshl_b32 s91, s4, 5"); e("v_add_u32 v2, s91, v2"); e("s_movk_i32 s91, 3584"); e("v_mul_lo_u32 v2, v2, s91")
    e("v_and_b32 v3, 1, v0"); e("v_lshl_add_u32 v2, v3, 4, v2")
    d(16, 2, 90, 0, 75, MINI + 16384)
    e(f"s_branch K1_MINIDONE_{C}")
    L.append(f"K1_MINI0_{C}:")
    e("s_lshl_b32 s90, s89, 8")
    d(12, VSB, 90, 0, 75, MINI); d(12, VSB, 90, 128, 75, MINI + 8192)
    L.append(f"K1_MINIDONE_{C}:")
    return L
def mini_compute(bhi):
    L = []; a = L.append
    FRG, AC = 128, 144
    a("s_cmp_eq_u32 s88, 1"); a("s_cselect_b32 s90, 3, 2")
    a("s_cmp_ge_u32 s3, s90"); a("s_cbranch_scc1 K1_MCDONE")
    for i in range(4): a(f"v_mov_b32 v{2+i}, 0x3f803f80")
    a("s_cmp_eq_u32 s88, 0"); a("s_cbranch_scc1 K1_MC0")
    def mf(h):
        a("s_waitcnt lgkmcnt(0)")
        for k4 in range(4):
            c = "0" if (h == 0 and k4 == 0) else rng(AC, 16)
            a(f"v_mfma_f32_32x32x16_bf16 {rng(AC,16)}, v[2:5], {rng(FRG+4*k4,4)}, {c}")
    a("s_cmp_eq_u32 s3, 2"); a("s_cbranch_scc1 K1_MC1N")
    a("v_bfe_u32 v6, v0, 4, 1"); a("v_lshrrev_b32 v7, 5, v0"); a("v_bfe_u32 v8, v0, 2, 2"); a("v_lshl_add_u32 v7, v7, 3, v8"); a("v_lshlrev_b32 v7, 6, v7")
    a("v_lshl_add_u32 v7, v6, 11, v7"); a("v_xor_b32 v6, s3, v6"); a("v_lshl_add_u32 v7, v6, 5, v7"); a("v_and_b32 v6, 3, v0"); a("v_lshl_add_u32 v6, v6, 3, v7")
    a(f"v_add_u32 v6, {MINI}, v6")
    for h in range(2):
        for k4 in range(4):
            ks = 4*h + k4
            o = (ks >> 1)*4096 + (ks & 1)*1024
            a(f"ds_read_b64_tr_b16 {rng(FRG+4*k4,2)}, v6 offset:{o}"); a(f"ds_read_b64_tr_b16 {rng(FRG+2+4*k4,2)}, v6 offset:{o+256}")
        mf(h)
    a("s_branch K1_MCM")
    a("K1_MC1N:")
    a("v_bfe_u32 v6, v0, 4, 1"); a("v_lshlrev_b32 v6, 12, v6"); a("v_lshrrev_b32 v7, 5, v0"); a("v_bfe_u32 v8, v0, 2, 2"); a("v_lshl_add_u32 v7, v7, 3, v8")
    a("v_lshl_add_u32 v6, v7, 5, v6"); a("v_and_b32 v7, 3, v0"); a("v_lshl_add_u32 v6, v7, 3, v6"); a(f"v_add_u32 v6, {MINI + 16384}, v6")
    for h in range(2):
        for k4 in range(4):
            o = (4*h + k4)*512
            a(f"ds_read_b64_tr_b16 {rng(FRG+4*k4,2)}, v6 offset:{o}"); a(f"ds_read_b64_tr_b16 {rng(FRG+2+4*k4,2)}, v6 offset:{o+128}")
        mf(h)
    a("s_branch K1_MCM")
    a("K1_MC0:")
    a("s_lshl_b32 s90, s3, 12"); a(f"s_add_u32 s90, s90, {MINI - bhi - 16384}")
    for h in range(2):
        for k4 in range(4):
            a(f"v_add_u32 v6, s90, v{VP + k4}"); a(f"ds_read_b128 {rng(FRG+4*k4,4)}, v6 offset:{h*8192}")
        mf(h)
    a("K1_MCM:")
    a("s_nop 15"); a("s_nop 3")
    a("s_lshl_b32 s90, s88, 1"); a("s_add_u32 s90, s90, s3"); a("s_cmp_eq_u32 s3, 2"); a("s_cselect_b32 s90, 8, s90")
    a("s_mul_i32 s91, s7, 9"); a("s_add_u32 s90, s90, s91"); a("s_lshl_b32 s90, s90, 10")
    a("s_lshr_b32 s91, s89, 1"); a("s_lshl_b32 s91, s91, 9"); a("s_add_u32 s90, s90, s91")
    a("s_and_b32 s91, s89, 1"); a("s_lshl_b32 s91, s91, 3"); a("s_add_u32 s90, s90, s91")
    a(f"v_mov_b32 v4, v{AC}"); a(f"v_mov_b32 v5, s{STAG}"); a(f"s_add_u32 s90, s90, {O_CS}")
    a("s_mov_b32 exec_hi, 0"); a(f"buffer_store_dwordx2 v[4:5], v{VLANE16}, s[24:27], s90 offen sc0 sc1"); a("s_mov_b64 exec, -1")
    a("K1_MCDONE:")
    return L
import k1b
k1b.VLANE16 = VLANE16; k1b.SC = SC
side_job = k1b.side_job

def gen_k1(name="k1_kernel"):
    slow_paths.clear()
    top = Em(); e = top.e
    top.L.append(f".globl {name}\n.p2align 8\n.type {name},@function\n{name}:")
    e("s_cmp_ge_u32 s2, 256"); e("s_cbranch_scc1 K1_END")
    if DIAG: e("s_memrealtime s[96:97]"); e("s_memtime s[98:99]")
    e("s_mov_b32 s32, 0")
    e("s_load_dwordx16 s[36:51], s[0:1], 0"); e("s_load_dwordx16 s[52:67], s[0:1], 64")
    e("v_lshrrev_b32 v1, 6, v0"); e("v_and_b32 v0, 63, v0"); e("s_nop 0"); e("v_readfirstlane_b32 s3, v1")
    e("s_and_b32 s72, s2, 7"); e("s_lshr_b32 s73, s2, 3")
    e("s_lshr_b32 s6, s72, 1"); e("s_lshl_b32 s6, s6, 2"); e("s_lshr_b32 s74, s73, 3"); e("s_add_u32 s6, s6, s74")
    e("s_and_b32 s7, s72, 1"); e("s_lshl_b32 s7, s7, 3"); e("s_and_b32 s74, s73, 7"); e("s_add_u32 s7, s7, s74")
    e("s_and_b32 s4, s3, 3"); e("s_lshr_b32 s5, s3, 2")
    e("s_lshl_b32 s75, s3, 10"); e("s_lshl_b32 s76, s3, 11"); e("s_lshl_b32 s78, s6, 17")
    e("s_lshr_b32 s74, s7, 2"); e("s_mul_i32 s74, s74, 896"); e("s_and_b32 s83, s7, 3")
    def sel4(dst, vals):
        e(f"s_mov_b32 s{dst}, {vals[0]}")
        for q in (1, 2, 3): e(f"s_cmp_eq_u32 s83, {q}"); e(f"s_cselect_b32 s{dst}, {vals[q]}, s{dst}")
        e(f"s_add_u32 s{dst}, s{dst}, s74")
    sel4(80, (128, 384, 448, 704)); sel4(81, (0, 256, 512, 768)); sel4(82, (192, 192, 640, 640)); sel4(79, (192, 224, 640, 672))
    e("s_lshr_b32 s74, s4, 1"); e("s_mul_i32 s77, s74, 12288"); e("s_lshl_b32 s85, s5, 11"); e("s_add_u32 s77, s77, s85")
    e("s_and_b32 s85, s4, 1"); e("s_lshl_b32 s85, s85, 10"); e("s_add_u32 s77, s77, s85")
    e("s_cmp_eq_u32 s74, 0"); e("s_cselect_b32 s87, s80, s82")
    e("v_lshrrev_b32 v2, 3, v0"); e("v_and_b32 v3, 7, v0"); e("v_lshrrev_b32 v4, 1, v2"); e("v_xor_b32 v5, v3, v4")
    e("s_lshl_b32 s74, s3, 14")
    e("v_lshlrev_b32 v6, 10, v2"); e("v_lshl_add_u32 v6, v5, 4, v6"); e(f"v_add_u32 v{VX0}, s74, v6")
    e("v_xor_b32 v7, 4, v5"); e("v_lshlrev_b32 v8, 10, v2"); e("v_lshl_add_u32 v8, v7, 4, v8")
    e("s_add_u32 s85, s74, 8192"); e(f"v_add_u32 v{VX1}, s85, v8")
    e("s_and_b32 s74, s4, 1"); e("s_lshl_b32 s74, s74, 2"); e("v_xor_b32 v7, s74, v5")
    e("v_lshlrev_b32 v8, 10, v2"); e("v_lshl_add_u32 v8, v7, 4, v8")
    e("s_lshl_b32 s74, s7, 15"); e("s_lshl_b32 s85, s4, 13"); e("s_add_u32 s74, s74, s85"); e(f"v_add_u32 v{VSB}, s74, v8")
    e("v_lshrrev_b32 v6, 2, v0"); e("s_and_b32 s74, s4, 1"); e("s_lshl_b32 s74, s74, 4"); e("v_add_u32 v6, s74, v6")
    e("s_movk_i32 s85, 3584"); e("v_mul_lo_u32 v6, v6, s85")
    e("v_and_b32 v7, 3, v0"); e("s_lshl_b32 s74, s5, 1"); e("v_xor_b32 v7, s74, v7"); e(f"v_lshl_add_u32 v{VT2}, v7, 4, v6")
    e("v_bfe_u32 v6, v2, 1, 1"); e("s_lshl_b32 s74, s5, 1"); e("v_or_b32 v6, s74, v6"); e("v_lshlrev_b32 v6, 1, v6"); e("v_xor_b32 v6, v3, v6")
    e("s_lshl_b32 s74, s4, 3"); e("v_add_u32 v7, s74, v2"); e("v_mul_lo_u32 v7, v7, s85"); e(f"v_lshl_add_u32 v{VT4}, v6, 4, v7")
    e(f"v_lshlrev_b32 v{VLANE16}, 4, v0")
    e("s_mov_b32 s83, s87")
    e("s_waitcnt lgkmcnt(0)")
    hstamp(top, 1)
    srd(top, 8, 36, 37, NROW*D*2)
    e("s_cmp_eq_u32 s5, 0")
    e("s_cselect_b32 s12, s42, s44"); e("s_cselect_b32 s13, s43, s45"); e(f"s_mov_b32 s14, {P*D*2}"); e("s_mov_b32 s15, 0x00020000")
    e("s_cselect_b32 s16, s56, s58"); e("s_cselect_b32 s17, s57, s59"); e(f"s_mov_b32 s18, {D*F*2}"); e("s_mov_b32 s19, 0x00020000")
    srd(top, 20, 66, 67, SZ_ACT, OFF_ACT); srd(top, 24, 66, 67, SZ_ST+SZ_CS+SZ_E+SZ_DN, OFF_ST)
    e("s_cmp_lg_u32 s2, 0"); e("s_cbranch_scc1 K1_NONONCE"); e("s_cmp_lg_u32 s3, 0"); e("s_cbranch_scc1 K1_NONONCE")
    e("s_memrealtime s[86:87]"); e("s_waitcnt lgkmcnt(0)"); e("s_or_b32 s86, s86, 1")
    e("v_mov_b32 v6, s86"); e("v_mov_b32 v7, 0"); e("s_mov_b64 exec, 1")
    e("global_store_dword v7, v6, s[64:65] sc0 sc1"); e("s_mov_b64 exec, -1")
    top.lab("K1_NONONCE")
    e("s_cmp_lg_u32 s3, 7"); e("s_cbranch_scc1 K1_NOPOLL"); e("v_mov_b32 v7, 0"); e("global_load_dword v12, v7, s[64:65] sc1")
    top.lab("K1_NOPOLL")
    e("s_lshr_b32 s88, s6, 2"); e("s_and_b32 s89, s6, 3")
    e("s_lshl_b32 s90, s7, 3"); e("s_add_u32 s90, s90, s3"); e("s_lshl_b32 s90, s90, 10"); e("s_add_u32 s90, s90, s78")
    VST = 48; VNON = 12
    top.vmem(f"buffer_load_dwordx4 {rng(VST,4)}, v{VLANE16}, s[8:11], s90 offen")
    e("s_mov_b32 s28, s38"); e("s_mov_b32 s29, s39"); e(f"s_mov_b32 s30, {P*2}"); e("s_mov_b32 s31, 0x00020000")
    e("v_and_b32 v6, 31, v0"); e("s_lshl_b32 s90, s7, 6"); e("v_lshl_add_u32 v6, v6, 1, s90")
    top.vmem(f"buffer_load_ushort v{VLRE}, v6, s[28:31], 0 offen"); e("s_mov_b32 s28, s40"); e("s_mov_b32 s29, s41")
    top.vmem(f"buffer_load_ushort v{VLIM}, v6, s[28:31], 0 offen"); e("s_mov_b32 s28, s50"); e("s_mov_b32 s29, s51")
    sq_lam = top.vmem(f"buffer_load_ushort v{VLDT}, v6, s[28:31], 0 offen")
    if ROT: e("s_lshr_b32 s90, s73, 3"); e("s_lshl_b32 s90, s90, 1"); e("s_add_u32 s90, s90, s73")
    else: e("s_mov_b32 s90, 0")
    for kb in range(8):
        e(f"s_add_u32 s91, s90, {kb}"); e("s_and_b32 s91, s91, 7"); e(f"s_lshl_b32 s{TA+kb}, s91, 7"); e(f"s_mul_i32 s{TB+kb}, s91, {64*3584}")
    sq = {}
    for f in xb_items(top, 0, sq) + w_items(top, 0, sq) + w_items(top, 1, sq): f()
    e("v_and_b32 v2, 31, v0"); e("v_lshrrev_b32 v3, 5, v0"); e("v_bfe_u32 v4, v2, 2, 1"); e("v_lshlrev_b32 v4, 4, v4")
    e("v_lshrrev_b32 v5, 3, v2"); e("v_lshl_add_u32 v4, v5, 2, v4"); e("v_and_b32 v5, 3, v2"); e(f"v_add_u32 v{VPI}, v4, v5")
    e(f"v_bfe_u32 v5, v{VPI}, 1, 3"); e("v_xor_b32 v5, v3, v5"); e(f"v_lshlrev_b32 v6, 7, v{VPI}"); e("v_lshl_add_u32 v6, v5, 4, v6")
    e("s_lshl_b32 s90, s4, 12"); e("v_add_u32 v6, s90, v6")
    for s4 in range(4): e(f"v_xor_b32 v{VXR+s4}, {32*s4}, v6")
    e("v_bfe_u32 v2, v0, 4, 1"); e("v_lshrrev_b32 v3, 5, v0"); e("v_bfe_u32 v4, v0, 2, 2"); e("v_and_b32 v5, 3, v0"); e("v_lshl_add_u32 v6, v3, 3, v4")
    e("v_lshlrev_b32 v7, 6, v6"); e("v_lshl_add_u32 v7, v5, 3, v7"); e("v_lshl_add_u32 v7, v2, 11, v7"); e("v_lshl_add_u32 v7, v2, 5, v7")
    e("v_lshlrev_b32 v8, 7, v6"); e("v_lshl_add_u32 v8, v5, 3, v8"); e("v_lshl_add_u32 v8, v2, 12, v8")
    e("v_bfe_u32 v9, v4, 1, 1"); e("v_lshl_or_b32 v9, v2, 1, v9"); e("v_lshl_add_u32 v8, v9, 5, v8"); e("v_add_u32 v8, 4096, v8")
    e("s_cmp_lg_u32 s5, 0"); e("s_cbranch_scc1 K1_PAT1")
    e("v_and_b32 v2, 31, v0"); e("v_lshrrev_b32 v3, 5, v0"); e("v_bfe_u32 v5, v2, 1, 3"); e("v_xor_b32 v5, v3, v5")
    e("v_lshlrev_b32 v6, 7, v2"); e("v_lshl_add_u32 v6, v5, 4, v6"); e("v_add_u32 v6, 16384, v6")
    for s4 in range(4): e(f"v_xor_b32 v{VP+s4}, {32*s4}, v6")
    e(f"v_mov_b32 v{VP+4}, v8")
    e("s_branch K1_PATD")
    top.lab("K1_PAT1")
    e(f"v_mov_b32 v{VP}, v7"); e(f"v_xor_b32 v{VP+1}, 32, v7")
    for j in (1, 2, 3): e(f"v_xor_b32 v{VP+1+j}, {32*j}, v8")
    e("s_and_b32 s90, s7, 1"); e("s_lshl_b32 s90, s90, 5"); e(f"v_xor_b32 v{VP+5}, s90, v7"); e(f"v_add_u32 v{VP+5}, 12288, v{VP+5}")
    top.lab("K1_PATD")
    top.wait_vm(0)
    e("s_mov_b32 s90, 0x3f803f80"); e("v_mov_b32 v2, 0"); e("v_mov_b32 v3, 0")
    for i in range(4): e(f"v_dot2_f32_bf16 v2, v{VST+i}, s90, v2"); e(f"v_dot2_f32_bf16 v3, v{VST+i}, v{VST+i}, v3")
    e("s_nop 2")
    for dpp in ("row_shr:1", "row_shr:2", "row_shr:4", "row_shr:8", "row_bcast:15 row_mask:0xa", "row_bcast:31 row_mask:0xc"):
        rm = "" if "row_mask" in dpp else " row_mask:0xf"
        e(f"v_add_f32_dpp v2, v2, v2 {dpp}{rm} bank_mask:0xf"); e(f"v_add_f32_dpp v3, v3, v3 {dpp}{rm} bank_mask:0xf"); e("s_nop 1")
    e("v_mul_f32 v2, 0x3b000000, v2"); e("v_mul_f32 v3, 0x3b000000, v3"); e("v_fma_f32 v3, -v2, v2, v3"); e("v_max_f32 v3, 0, v3")
    e("v_cvt_pk_bf16_f32 v4, v2, v3"); e("v_and_b32 v5, 0xffff0000, v4"); e("v_add_f32 v5, 0x3727c5ac, v5")
    e("v_cvt_pk_bf16_f32 v5, v5, v5"); e("v_lshlrev_b32 v5, 16, v5"); e("v_sqrt_f32 v5, v5"); e("s_nop 0"); e("v_cvt_pk_bf16_f32 v8, v2, v5")
    e("s_cmp_lg_u32 s3, 7"); e("s_cbranch_scc1 K1_NN2")
    top.lab("K1_NLOOP")
    e(f"v_readfirstlane_b32 s{STAG}, v{VNON}"); e(f"s_cmp_lg_u32 s{STAG}, 0"); e("s_cbranch_scc1 K1_NGOT")
    e("v_mov_b32 v7, 0"); e(f"global_load_dword v{VNON}, v7, s[64:65] sc1"); e("s_waitcnt vmcnt(0)")
    e("s_add_u32 s32, s32, 1"); e(f"s_cmp_lt_u32 s32, {SPIN_MAX}"); e("s_cbranch_scc1 K1_NLOOP")
    top.lab("K1_NGOT")
    e(f"v_mov_b32 v7, {L_NONCE}"); e(f"ds_write_b32 v7, v{VNON}"); e("s_waitcnt lgkmcnt(0)")
    top.lab("K1_NN2")
    top.wait_vm(sq[("w", 0)])
    e("s_barrier")
    hstamp(top, 2)
    e(f"v_mov_b32 v7, {L_NONCE}"); e("ds_read_b32 v6, v7"); e("s_waitcnt lgkmcnt(0)"); e(f"v_readfirstlane_b32 s{STAG}, v6")
    e("s_lshl_b32 s90, s6, 7"); e("s_lshl_b32 s91, s7, 3"); e("s_add_u32 s90, s90, s91"); e("s_add_u32 s90, s90, s3"); e("s_lshl_b32 s90, s90, 3")
    e(f"v_mov_b32 v9, s{STAG}"); e("v_mov_b32 v7, 0"); e("s_mov_b32 exec_lo, 0"); e("s_brev_b32 exec_hi, 1")
    top.vmem(f"buffer_store_dwordx2 v[8:9], v7, s[24:27], s90 offen offset:{O_ST} sc0 sc1")
    e("s_mov_b64 exec, -1")
    e("s_cmp_lg_u32 s5, 0"); e("s_cbranch_scc1 K1_CH1")
    from k1c_ch import gen_ch
    texts = [top.text()]
    for ch in range(2): texts.append(gen_ch(ch, top, sq, sq_lam))
    tail = Em(); tail.lab("K1_FIN")
    from k2g import gen_part2
    gen_part2(tail)
    e = tail.e
    if DIAG:
        e("s_waitcnt vmcnt(0)")
        e("s_memrealtime s[86:87]"); e("s_memtime s[88:89]"); e("s_waitcnt lgkmcnt(0)")
        e("s_cmp_lg_u32 s3, 0"); e("s_cbranch_scc1 K1_END")
        e("v_mov_b32 v20, s96"); e("v_mov_b32 v21, s86"); e("s_sub_u32 s88, s88, s98"); e("v_mov_b32 v22, s88"); e("v_mov_b32 v23, 0")
        e("v_mov_b32 v28, s70"); e("v_mov_b32 v29, s71"); e("v_mov_b32 v30, s72"); e("v_mov_b32 v31, s73")
        e("s_lshl_b32 s50, s2, 5"); e(f"s_add_u32 s50, s50, {OFF_TS}"); e("v_mov_b32 v24, s50")
        e("s_mov_b64 exec, 1"); e("global_store_dwordx4 v24, v[20:23], s[66:67]"); e("global_store_dwordx4 v24, v[28:31], s[66:67] offset:16")
    if HDBG:
        e("s_waitcnt vmcnt(0)"); hstamp(tail, 7)
        e("s_cmp_lg_u32 s2, 37"); e("s_cbranch_scc1 K1_END"); e("s_cmp_lg_u32 s3, 0"); e("s_cbranch_scc1 K1_END")
        for i in range(2, 8): e(f"s_sub_u32 s34, s{HREG[i]}, s96"); e(f"v_mov_b32 v{20+i}, s34")
        e("v_mov_b32 v20, 0"); e("s_mov_b64 exec, 1")
        e("global_store_dwordx4 v20, v[22:25], s[64:65] offset:16"); e("global_store_dwordx2 v20, v[26:27], s[64:65] offset:32")
    tail.lab("K1_END"); tail.e("s_endpgm")
    return "".join(texts) + tail.text() + "\n".join(slow_paths) + "\n", kd(name, 256), LDS_TOTAL
```

```python
import k1c
from k1c import *

def gen_ch(ch, top, sq_in, sq_lam):
    em = Em(); em.vm = top.vm; em.vm_done = top.vm_done; e = em.e
    st = Stream(em); sq = dict(sq_in); C = f"C{ch}"
    em.lab(f"K1_CH{ch}")
    base_now = {}
    def set_base(regs, key, base):
        hi = base & ~0x7fff; cur = base_now.get(key, 0)
        if hi != cur:
            for r in regs:
                d = hi - cur
                em.e(f"v_add_u32 v{r}, {d}, v{r}" if d > 0 else f"v_subrev_u32 v{r}, {-d}, v{r}")
            base_now[key] = hi
        return base - hi
    xregs = list(range(VXR, VXR+4)) + (list(range(VP, VP+4)) if ch == 0 else [])
    wregs = [VP+4] if ch == 0 else list(range(VP, VP+6))
    def xreg(ks): return XRING + 4*(ks % NXR)
    def x_read(ks):
        imm = set_base(xregs, "x", XB[(ks >> 2) % 3])
        return em.lds(f"ds_read_b128 {rng(xreg(ks),4)}, v{VXR + (ks & 3)} offset:{imm}")
    def ssm_read(dst, ks, im):
        imm = set_base(xregs, "x", XB[(ks >> 2) % 3])
        return em.lds(f"ds_read_b128 {rng(dst,4)}, v{VP + (ks & 3)} offset:{imm + 4096*im}")
    def tr_read(dst, ks, preg, step, h2):
        imm = set_base(wregs, "w", WB[(ks >> 1) % 5])
        em.lds(f"ds_read_b64_tr_b16 {rng(dst,2)}, v{preg} offset:{imm + (ks & 1)*step}")
        return em.lds(f"ds_read_b64_tr_b16 {rng(dst+2,2)}, v{preg} offset:{imm + (ks & 1)*step + h2}")
    if ch == 0:
        tl = [(0, ACC0, "xa", lambda d, ks: ssm_read(d, ks, 0)), (1, ACC0+16, "xa", lambda d, ks: ssm_read(d, ks, 1)),
              (4, ACC0+32, "wa", lambda d, ks: tr_read(d, ks, VP+4, 2048, 512))]
    else:
        tl = [(2, ACC0, "wa", lambda d, ks: tr_read(d, ks, VP, 1024, 256)), (3, ACC0+16, "wa", lambda d, ks: tr_read(d, ks, VP+1, 1024, 256)),
              (5, ACC0+32, "wa", lambda d, ks: tr_read(d, ks, VP+2, 2048, 512)), (6, ACC0+48, "wa", lambda d, ks: tr_read(d, ks, VP+3, 2048, 512)),
              (7, ACC0+64, "wa", lambda d, ks: tr_read(d, ks, VP+4, 2048, 512)), (8, ACC0+80, "wa", lambda d, ks: tr_read(d, ks, VP+5, 1024, 256))]
    units = []
    for ks in range(32):
        for n, t in enumerate(tl):
            units.append(dict(ks=ks, t=t, first=(n == 0), bar=(f"B{ks>>1}" if (n == 0 and ks % 2 == 0 and ks > 0) else None)))
    stamp_n = [0]
    def stamp():
        if DIAG and ch == 1:
            e("s_memtime s[34:35]"); e("s_waitcnt lgkmcnt(0)"); em.lg_done = em.lg
            e("s_sub_u32 s34, s34, s98"); e(f"v_writelane_b32 v19, s34, {stamp_n[0]}"); stamp_n[0] += 1
    dq = []
    def drain_dq(n=10**9):
        while dq and n > 0: dq.pop(0)(); n -= 1
    holder = {}
    MINI_AT = 2
    def mini_item():
        em.L += mini_dma_lines(C); sq["mini"] = em.vm - 1
    def barrier(name, plain=False):
        drain_dq()
        if not plain:
            i = int(name[1:])
            em.wait_vm(sq[("w", i)])
            if i % 2 == 0: em.wait_vm(sq[("xb", i//2)])
            if i == MINI_AT: em.wait_vm(sq["mini"])
            if name == f"B{WTF_AT}" and ch == 0: st.flush_until("sj_done"); em.wait_vm(holder["sjst"])
        e("s_waitcnt lgkmcnt(0)"); em.lg_done = em.lg
        if not plain and i % 2 == 0: stamp()
        e("s_barrier")
        st.signal(name)
        if plain: return
        if i == GATHER_AT:
            for f_ in issue_stats(240) + issue_cs_all(): f_(em)
        if i == WTF_AT and ch == 0:
            for l in ["s_cmp_lg_u32 s3, 0", "s_cbranch_scc1 K1_NOWTF", "s_lshl_b32 s90, s6, 4", "s_add_u32 s90, s90, s7", "s_lshl_b32 s90, s90, 4", f"s_add_u32 s90, s90, {O_DN + 8}",
                      f"v_mov_b32 v2, s{STAG}", f"v_mov_b32 v3, s{STAG}", "v_mov_b32 v4, 0", "s_mov_b64 exec, 1",
                      "buffer_store_dwordx2 v[2:3], v4, s[24:27], s90 offen sc0 sc1", "s_mov_b64 exec, -1"]: e(l)
            em.lab("K1_NOWTF")
        if i + 4 <= 15 and (i >= 1): dq.extend(w_items(em, i + 4, sq)) if (i + 4) >= 5 else None
        if i % 2 == 0 and i//2 + 2 <= 7 and (i//2 + 2) >= 3: dq.extend(xb_items(em, i//2 + 2, sq))
        if i == MINI_AT:
            if ch == 0:
                for l in mini_compute(base_now.get("x", 0)):
                    if l.endswith(":"): em.L.append(l)
                    else: e(l)
        if i == MINI_AT + 1: dq.extend(xb_items(em, 2, sq))
    GATHER_AT = env("GATHER_AT", 8); PROC_AT = env("PROC_AT", 11); WTF_AT = env("WTF_AT", 9)
    e("s_lshl_b32 s68, s6, 2"); e("s_add_u32 s68, s68, s4"); e(f"s_mul_i32 s68, s68, {NKS*1024}")
    e("s_mul_i32 s69, s7, 9"); e("s_lshl_b32 s69, s69, 10"); e(f"s_add_u32 s69, s69, {O_CS}")
    e("s_lshl_b32 s71, s6, 7"); e("s_lshl_b32 s90, s4, 5"); e("s_add_u32 s71, s71, s90"); e("s_lshl_b32 s71, s71, 3")
    if DIAG and ch == 1: em.wait_vm(sq_lam)
    stamp()
    tiles = [t[0] for t in tl]
    GC = {t: 176 + 4*n for n, t in enumerate(tiles)}
    CSB = L_CSF + (0 if ch == 0 else 3*512)
    def issue_stats(dst):
        def f(em_):
            holder["st"] = tagged_load(em_, [f"v_lshlrev_b32 v{dst}, 3, v{VPI}"],
                [f"buffer_load_dwordx2 {rng(dst,2)}, v{dst}, s[24:27], s71 offen offset:{O_ST} sc1"], [dst+1], f"K1{C}_ST")
        return [f]
    def proc_stats(src):
        return [lambda em_: holder["st"](em_), f"v_and_b32 v{VRS}, 0xffff0000, v{src}", f"v_mul_f32 v{VI2}, v{VRS}, v{VRS}", f"v_rcp_f32 v{VRS}, v{VRS}",
                f"v_and_b32 v{src+1}, 0xffff, v{src}", f"v_xor_b32 v{src+1}, 0x8000, v{src+1}", f"v_cmp_gt_u32 vcc, 32, v0",
                f"v_lshl_or_b32 v{src}, v{src+1}, 16, v{src+1}", f"v_mul_f32 v{VC1}, {NLOG2E}, v{VRS}",
                f"v_cndmask_b32 v{src}, 0, v{src}, vcc", f"v_cndmask_b32 v{src+1}, 0, v{src+1}, vcc"]
    def issue_cs_all():
        out = []
        for t in tiles:
            def f(em_, t=t):
                holder[("cs", t)] = tagged_load(em_, [f"s_add_u32 s90, s69, {t*1024}"],
                    [f"buffer_load_dwordx4 {rng(GC[t],4)}, v{VLANE16}, s[24:27], s90 offen sc1"], [GC[t]+1, GC[t]+3], f"K1{C}_CS{t}")
            out.append(f)
        return out
    def build_csf_all():
        seq = []
        for t in tiles: seq.append(lambda em_, t=t: holder[("cs", t)](em_))
        def each(fn):
            for t in tiles: seq.append(fn(GC[t]))
        each(lambda g: f"v_add_f32 v{g}, v{g}, v{g+2}"); each(lambda g: f"v_mov_b32 v{g+1}, v{g}"); seq.append("s_nop 1")
        each(lambda g: f"v_permlane32_swap_b32 v{g}, v{g+1}"); seq.append("s_nop 1")
        each(lambda g: f"v_add_f32 v{g+2}, v{g}, v{g+1}"); each(lambda g: f"v_cvt_pk_bf16_f32 v{g+3}, v{g+2}, v{g+2}")
        each(lambda g: f"v_lshlrev_b32 v{g+3}, 16, v{g+3}"); each(lambda g: f"v_sub_f32 v{g+3}, v{g+2}, v{g+3}")
        each(lambda g: f"v_cvt_pk_bf16_f32 v{g}, v{g+2}, v{g+3}"); each(lambda g: f"v_and_b32 v{g+2}, 0xffff0000, v{g}")
        each(lambda g: f"v_sub_f32 v{g+3}, v{g+3}, v{g+2}"); each(lambda g: f"v_cvt_pk_bf16_f32 v{g+1}, v{g+3}, 0")
        each(lambda g: f"v_mov_b32 v{g+2}, 0"); each(lambda g: f"v_mov_b32 v{g+3}, 0")
        return seq
    XM = 12
    def set_xm(src): return [f"v_mov_b32 v{XM}, v{src}", f"v_mov_b32 v{XM+1}, v{src+1}", f"v_mov_b32 v{XM+2}, 0", f"v_mov_b32 v{XM+3}, 0"]
    def corr(t):
        cs, acc, ori, _ = t
        if ori == "wa": return [f"v_mfma_f32_32x32x16_bf16 {rng(acc,16)}, {rng(GC[cs],4)}, {rng(XM,4)}, {rng(acc,16)}"]
        return [f"v_mfma_f32_32x32x16_bf16 {rng(acc,16)}, {rng(XM,4)}, {rng(GC[cs],4)}, {rng(acc,16)}"]
    def ffn_epi(acc, sreg, jadd, OUT=2, T=6):
        seq = []
        for i in range(4):
            g0, g1, u0, u1 = acc+2*i, acc+2*i+1, acc+8+2*i, acc+8+2*i+1
            seq += [f"v_mul_f32 v{T}, v{g0}, v{VC1}", f"v_mul_f32 v{T+1}, v{g1}, v{VC1}", f"v_exp_f32 v{T}, v{T}", f"v_exp_f32 v{T+1}, v{T+1}",
                    f"v_mul_f32 v{T+2}, v{g0}, v{u0}", f"v_mul_f32 v{T+3}, v{g1}, v{u1}",
                    f"v_fma_f32 v{T}, v{T}, v{VI2}, v{VI2}", f"v_fma_f32 v{T+1}, v{T+1}, v{VI2}, v{VI2}",
                    f"v_rcp_f32 v{T}, v{T}", f"v_rcp_f32 v{T+1}, v{T+1}", (f"s_lshl_b32 s90, s{sreg}, 5" if i == 3 else "s_nop 0"),
                    f"v_mul_f32 v{T+2}, v{T+2}, v{T}", f"v_mul_f32 v{T+3}, v{T+3}, v{T+1}", f"v_cvt_pk_bf16_f32 v{OUT+i}, v{T+2}, v{T+3}"]
        seq += [f"s_add_u32 s90, s90, s68", f"s_add_u32 s90, s90, {(64+jadd)*1024}",
                lambda em_: em_.vmem(f"buffer_store_dwordx4 {rng(OUT,4)}, v{VLANE16}, s[20:23], s90 offen{SC}"), "s_nop 0"]
        return seq
    LAM, L16, L128, CO2, CC, PWA, PWB = 120, 122, 124, 126, 128, 130, 131
    if ch == 0:
        def csq(dst, src, t):
            return [f"v_mul_f32 v{t}, v{src}, v{src}", f"v_mul_f32 v{t+1}, v{src}, v{src+1}", f"v_fma_f32 v{dst}, -v{src+1}, v{src+1}, v{t}", f"v_add_f32 v{dst+1}, v{t+1}, v{t+1}"]
        lam = [lambda em_: em_.wait_vm(sq_lam),
               f"v_lshlrev_b32 v2, 16, v{VLRE}", f"v_lshlrev_b32 v3, 16, v{VLIM}", f"v_lshlrev_b32 v4, 16, v{VLDT}",
               f"v_mul_f32 v4, {LOG2E}, v4", "v_exp_f32 v4, v4", "s_nop 0", "v_cvt_pk_bf16_f32 v4, v4, v4", "v_lshlrev_b32 v4, 16, v4",
               "v_mul_f32 v5, v4, v2", "v_mul_f32 v6, v4, v3", f"v_mul_f32 v5, {LOG2E}, v5", f"v_mul_f32 v6, {INV2PI}, v6",
               "v_exp_f32 v5, v5", "v_fract_f32 v6, v6", "s_nop 0", "v_cos_f32 v7, v6", "v_sin_f32 v8, v6", "s_nop 0",
               f"v_mul_f32 v{LAM}, v5, v7", f"v_mul_f32 v{LAM+1}, v5, v8", f"v_subrev_f32 v7, 1.0, v{LAM}",
               "v_mul_f32 v9, v2, v2", "v_fma_f32 v9, v3, v3, v9", "v_rcp_f32 v9, v9",
               "v_mul_f32 v10, v7, v2", f"v_fma_f32 v10, v{LAM+1}, v3, v10", f"v_mul_f32 v11, v{LAM+1}, v2", "v_fma_f32 v11, -v7, v3, v11",
               "v_add_f32 v9, v9, v9", f"v_mul_f32 v{CO2}, v10, v9", f"v_mul_f32 v{CO2+1}, v11, v9"]
        lam += csq(L16, LAM, 2) + csq(L16, L16, 2) + csq(L16, L16, 2) + csq(L16, L16, 2) + csq(L128, L16, 2) + csq(L128, L128, 2) + csq(L128, L128, 2)
        lam += csq(2, L16, 4) + csq(6, 2, 4)
        lam += [f"v_mul_f32 v8, v2, v6", f"v_mul_f32 v9, v2, v7", f"v_fma_f32 v8, -v3, v7, v8", f"v_fma_f32 v9, v3, v6, v9",
                [f"s_cmp_eq_u32 s4, 1", "s_cselect_b64 s[92:93], -1, 0"], "v_mov_b32 v10, 1.0", "v_mov_b32 v11, 0",
                "v_cndmask_b32 v10, v10, v2, s[92:93]", "v_cndmask_b32 v11, v11, v3, s[92:93]",
                [f"s_cmp_eq_u32 s4, 2", "s_cselect_b64 s[92:93], -1, 0"], "v_cndmask_b32 v10, v10, v6, s[92:93]", "v_cndmask_b32 v11, v11, v7, s[92:93]",
                [f"s_cmp_eq_u32 s4, 3", "s_cselect_b64 s[92:93], -1, 0"], "v_cndmask_b32 v10, v10, v8, s[92:93]", "v_cndmask_b32 v11, v11, v9, s[92:93]",
                f"v_mul_f32 v2, v{L16}, v10", f"v_mul_f32 v3, v{L16}, v11", f"v_fma_f32 v2, -v{L16+1}, v11, v2", f"v_fma_f32 v3, v{L16+1}, v10, v3",
                "v_cmp_lt_u32 vcc, 31, v0", "s_nop 1", f"v_cndmask_b32 v{PWA}, v10, v2, vcc", f"v_cndmask_b32 v{PWB}, v11, v3, vcc"]
        sj_ld, sj_st = side_job(136)
        st.add([("after", "B3")] + sj_ld + lam + [("after", "B6")] + sj_st + [lambda em_: holder.__setitem__("sjst", em_.vm - 1), ("mark", "sj_done")])
        st.add([("after", f"B{PROC_AT}")] + proc_stats(240) + build_csf_all())
        st.add([f"s_lshl_b32 s86, s4, 7", f"s_add_u32 s86, s86, {L_RS}", f"v_lshlrev_b32 v2, 2, v{VPI}", f"v_add_u32 v2, s86, v2", lambda em_: em_.lds(f"ds_write_b32 v2, v{VRS}")])
    else:
        st.add([("after", f"B{PROC_AT}")] + proc_stats(240) + build_csf_all())
    st.add(set_xm(240) + [("mark", "pre_epi")])
    def issue_wtpoll(em_):
        holder["wtp"] = tagged_load(em_, ["s_and_b32 s90, s2, 7", "s_lshr_b32 s91, s2, 3", "s_and_b32 s90, s90, 1", "s_lshl_b32 s90, s90, 2", "s_and_b32 s91, s91, 3", "s_add_u32 s90, s90, s91",
                                          "s_lshl_b32 s90, s90, 5", "v_and_b32 v70, 31, v0", "v_add_u32 v70, s90, v70", "v_lshlrev_b32 v70, 4, v70", f"s_mov_b32 s90, {O_DN + 8}"],
                                    ["buffer_load_dword v71, v70, s[24:27], s90 offen sc1"], [71], f"K1{C}_WTP")
    st.add([("after", "B14"), issue_wtpoll])
    for f in w_items(em, 2, sq) + xb_items(em, 1, sq) + [mini_item] + w_items(em, 3, sq) + w_items(em, 4, sq): dq.append(f)
    NU = len(units); rd_seq = {}; done_bar = set(); xr_seq = {}
    def issue_reads(i):
        u = units[i]
        if u["bar"] and u["bar"] not in done_bar: barrier(u["bar"]); done_bar.add(u["bar"])
        if NOCOMP: rd_seq[i] = -1; return
        if u["first"]: x_read(u["ks"])
        rd_seq[i] = u["t"][3](WR + 4*(i % NR), u["ks"])
    nxt = 0
    nt = len(tl)
    for i in range(NU):
        u = units[i]
        while nxt < NU and nxt <= i + NR - 1:
            un = units[nxt]
            if un["first"] and un["ks"] - NXR >= u["ks"]: break
            issue_reads(nxt); nxt += 1
        if NOCOMP:
            drain_dq(DQ_RATE)
            if NOFILL: continue
            st.fill(NF[ch]); continue
        em.wait_lg(rd_seq[i])
        cs, acc, ori, _ = u["t"]
        c = "0" if u["ks"] == 0 else rng(acc, 16)
        w = rng(WR + 4*(i % NR), 4); x = rng(xreg(u["ks"]), 4)
        if ori == "wa": e(f"v_mfma_f32_32x32x16_bf16 {rng(acc,16)}, {w}, {x}, {c}")
        else: e(f"v_mfma_f32_32x32x16_bf16 {rng(acc,16)}, {x}, {w}, {c}")
        drain_dq(DQ_RATE)
        if not NOFILL: st.fill(NF[ch])
    stamp()
    st.flush()
    hstamp(em, 3) if ch == 0 else None
    def emit(seq):
        for x in seq:
            for y in (x if isinstance(x, list) else [x]):
                y(em) if callable(y) else e(y)
    for t in tl: emit(corr(t))
    from k2g import wt_prefetch
    if ch == 1:
        emit(["s_nop 7", "s_nop 3"])
        emit(ffn_epi(tl[0][1], 80, 0) + ffn_epi(tl[1][1], 80, 1) + ffn_epi(tl[2][1], 81, 1))
        barrier("BE1", plain=True)
        emit(ffn_epi(tl[3][1], 81, 2) + ffn_epi(tl[4][1], 81, 3) + ffn_epi(tl[5][1], 79, 0))
        holder["wtp"](em); wt_prefetch(em)
        stamp()
    else:
        RE, IM = ACC0, ACC0+16
        seqs = ["v_lshrrev_b32 v3, 5, v0", "v_lshlrev_b32 v3, 6, v3", f"v_add_u32 v3, s86, v3"]
        for q in range(4): seqs.append(lambda em_, q=q: holder.__setitem__(("rs", q), em_.lds(f"ds_read_b128 {rng(46+4*q,4)}, v3 offset:{16*q}")))
        seqs += [lambda em_: em_.wait_lg(holder[("rs", 3)]), "s_nop 3"]
        for r in range(16): seqs += [f"v_mul_f32 v{RE+r}, v{RE+r}, v{46+r}", f"v_mul_f32 v{IM+r}, v{IM+r}, v{46+r}"]
        seqs += [f"v_fma_f32 v2, v{LAM}, v{RE}, v{RE+1}", f"v_fma_f32 v3, v{LAM}, v{IM}, v{IM+1}", f"v_fma_f32 v2, -v{LAM+1}, v{IM}, v2", f"v_fma_f32 v3, v{LAM+1}, v{RE}, v3"]
        cur = 2
        for r in range(2, 16):
            nx = 6 - cur
            seqs += [f"v_fma_f32 v{nx}, v{LAM}, v{cur}, v{RE+r}", f"v_fma_f32 v{nx+1}, v{LAM}, v{cur+1}, v{IM+r}",
                     f"v_fma_f32 v{nx}, -v{LAM+1}, v{cur+1}, v{nx}", f"v_fma_f32 v{nx+1}, v{LAM+1}, v{cur}, v{nx+1}"]
            cur = nx
        seqs += [f"s_lshl_b32 s90, s4, 9", f"s_add_u32 s90, s90, {L_SEG}", "v_lshlrev_b32 v6, 3, v0", "v_add_u32 v6, s90, v6",
                 lambda em_, cur=cur: em_.lds(f"ds_write_b64 v6, {rng(cur,2)}")]
        emit(seqs)
        barrier("BE1", plain=True)
        SG = 46
        blk = [f"v_mov_b32 v{CC}, 0", f"v_mov_b32 v{CC+1}, 0"]
        for s_ in range(6):
            if s_ % 2 == 0: blk += [f"s_cmp_le_u32 s4, {s_//2}", f"s_cbranch_scc1 K1{C}_SGD"]
            blk += [f"v_fma_f32 v2, v{L16}, v{CC}, v{SG+2*s_}", f"v_fma_f32 v3, v{L16}, v{CC+1}, v{SG+1+2*s_}",
                    f"v_fma_f32 v2, -v{L16+1}, v{CC+1}, v2", f"v_fma_f32 v{CC+1}, v{L16+1}, v{CC}, v3", f"v_mov_b32 v{CC}, v2"]
        blk.append(lambda em_: em_.lab(f"K1{C}_SGD"))
        def rd_seg(em_):
            for s_ in range(6): em_.lds(f"ds_read_b64 {rng(SG+2*s_,2)}, v6 offset:{256*s_}")
        emit(["v_and_b32 v6, 31, v0", "v_lshlrev_b32 v6, 3, v6", f"v_add_u32 v6, {L_SEG}, v6", rd_seg, "s_lshl_b32 s90, s4, 9", "v_add_u32 v7, s90, v6",
              lambda em_: em_.lds(f"ds_read_b64 v[8:9], v7"), lambda em_: holder.__setitem__("e2", em_.lds(f"ds_read_b64 v[10:11], v7 offset:256")),
              lambda em_: em_.wait_lg(holder["e2"]), blk,
              f"v_fma_f32 v2, v{L16}, v{CC}, v8", f"v_fma_f32 v3, v{L16}, v{CC+1}, v9", f"v_fma_f32 v2, -v{L16+1}, v{CC+1}, v2", f"v_fma_f32 v3, v{L16+1}, v{CC}, v3",
              f"v_fma_f32 v4, v{L16}, v2, v10", f"v_fma_f32 v6, v{L16}, v3, v11", f"v_fma_f32 v4, -v{L16+1}, v3, v4", f"v_fma_f32 v6, v{L16+1}, v2, v6",
              "v_cmp_lt_u32 vcc, 31, v0", f"v_mov_b32 v5, s{STAG}", f"v_mov_b32 v7, s{STAG}",
              f"v_cndmask_b32 v{CC}, v{CC}, v2, vcc", f"v_cndmask_b32 v{CC+1}, v{CC+1}, v3, vcc",
              "s_lshl_b32 s90, s7, 4", "s_add_u32 s90, s90, s6", "s_lshl_b32 s90, s90, 9", f"s_add_u32 s90, s90, {O_E}",
              "s_cmp_eq_u32 s4, 3", "s_cselect_b32 exec_lo, -1, 0", "s_mov_b32 exec_hi, 0", f"s_cbranch_execz K1{C}_NOPUB",
              f"buffer_store_dwordx4 v[4:7], v{VLANE16}, s[24:27], s90 offen sc0 sc1", lambda em_: em_.lab(f"K1{C}_NOPUB"), "s_mov_b64 exec, -1", "s_nop 1"])
        emit(ffn_epi(tl[2][1], 81, 0))
        EG = 176; HH = 132
        epre = ["s_lshl_b32 s90, s7, 13", f"s_add_u32 s90, s90, {O_E}", "s_add_u32 s91, s90, 4096", "v_and_b32 v2, 31, v0", "v_lshlrev_b32 v2, 4, v2"]
        eld = [f"buffer_load_dwordx4 {rng(EG+4*j,4)}, v2, s[24:27], s{90 + (j//8)} offen offset:{512*(j%8)} sc1" for j in range(16)]
        emit(epre)
        for l in eld: em.vmem(l)
        def tagchk(sfx):
            L = ["    v_mov_b32 v3, 0"]
            for j in range(15):
                L += [f"    s_cmp_le_u32 s6, {j}", f"    s_cbranch_scc1 K1{C}_TCD{sfx}", f"    v_xor_b32 v4, s{STAG}, v{EG+4*j+1}", f"    v_xor_b32 v5, s{STAG}, v{EG+4*j+3}", "    v_or3_b32 v3, v3, v4, v5"]
            return L + [f"K1{C}_TCD{sfx}:", "    v_cmp_ne_u32 vcc, 0, v3"]
        e("s_waitcnt vmcnt(0)"); em.vm_done = em.vm
        if not NOTAG:
            em.L += tagchk("F"); e(f"s_cbranch_vccnz K1{C}_E_SLOW"); em.lab(f"K1{C}_E_OK")
            slow_paths.append("\n".join([f"K1{C}_E_SLOW:", "    s_sleep 1"] + ["    " + x for x in epre + eld] + ["    s_waitcnt vmcnt(0)"] + tagchk("S") +
                [f"    s_cbranch_vccz K1{C}_E_OK", "    s_add_u32 s32, s32, 1", f"    s_cmp_lt_u32 s32, {SPIN_MAX}", f"    s_cbranch_scc1 K1{C}_E_SLOW", f"    s_branch K1{C}_E_OK"]))
        e(f"v_mov_b32 v{HH}, 0"); e(f"v_mov_b32 v{HH+1}, 0")
        for j in range(15):
            R = EG + 4*j
            emit([f"s_cmp_le_u32 s6, {j}", f"s_cbranch_scc1 K1{C}_HD", f"v_fma_f32 v2, v{L128}, v{HH}, v{R}", f"v_fma_f32 v3, v{L128}, v{HH+1}, v{R+2}",
                  f"v_fma_f32 v2, -v{L128+1}, v{HH+1}, v2", f"v_fma_f32 v{HH+1}, v{L128+1}, v{HH}, v3", f"v_mov_b32 v{HH}, v2"])
        em.lab(f"K1{C}_HD")
        emit([f"v_fma_f32 v{CC}, v{PWA}, v{HH}, v{CC}", f"v_fma_f32 v{CC+1}, v{PWA}, v{HH+1}, v{CC+1}",
              f"v_fma_f32 v{CC}, -v{PWB}, v{HH+1}, v{CC}", f"v_fma_f32 v{CC+1}, v{PWB}, v{HH}, v{CC+1}",
              f"s_mul_i32 s90, s4, 4608", f"s_add_u32 s90, s90, {HT_A}", "v_lshrrev_b32 v6, 5, v0", "v_mul_u32_u24 v6, 2304, v6",
              "v_and_b32 v7, 31, v0", "v_lshl_add_u32 v6, v7, 2, v6", "v_add_u32 v6, s90, v6"])
        cur = CC
        for r in range(16):
            nx = 2 if cur != 2 else 4
            emit([f"v_fma_f32 v{nx}, v{LAM}, v{cur}, v{RE+r}", f"v_fma_f32 v{nx+1}, v{LAM}, v{cur+1}, v{IM+r}",
                  f"v_fma_f32 v{nx}, -v{LAM+1}, v{cur+1}, v{nx}", f"v_fma_f32 v{nx+1}, v{LAM+1}, v{cur}, v{nx+1}",
                  f"v_mul_f32 v8, v{CO2}, v{nx}", f"v_mul_f32 v9, v{CO2}, v{nx+1}", f"v_fma_f32 v8, -v{CO2+1}, v{nx+1}, v8", f"v_fma_f32 v9, v{CO2+1}, v{nx}, v9",
                  f"v_cvt_pk_bf16_f32 v8, v8, -v9", lambda em_, r=r: em_.lds(f"ds_write_b32 v6, v8 offset:{144*r}")])
            cur = nx
        emit([f"v_mul_u32_u24 v6, 144, v{VPI}", "v_lshrrev_b32 v7, 5, v0", "v_lshl_add_u32 v6, v7, 4, v6", "v_add_u32 v6, s90, v6", "s_waitcnt lgkmcnt(0)"])
        em.lg_done = em.lg
        for s_ in range(4): holder["ht"] = em.lds(f"ds_read_b128 {rng(46+4*s_,4)}, v6 offset:{32*s_}")
        em.wait_lg(holder["ht"])
        emit(["s_lshl_b32 s90, s7, 12", "s_add_u32 s90, s90, s68"])
        for s_ in range(4): em.vmem(f"buffer_store_dwordx4 {rng(46+4*s_,4)}, v{VLANE16}, s[20:23], s90 offen offset:{1024*s_}{SC}")
        holder["wtp"](em); wt_prefetch(em)
    if DIAG and ch == 1:
        e("s_cmp_lg_u32 s3, 4"); e("s_cbranch_scc1 K1_FIN")
        e("s_lshl_b32 s34, s2, 8"); e(f"s_add_u32 s34, s34, {OFF_TS + 65536}"); e("v_lshlrev_b32 v20, 2, v0"); e("v_add_u32 v20, s34, v20")
        e("global_store_dword v20, v19, s[66:67]")
    e("s_branch K1_FIN")
    return em.text()
```

```python
from common import *
import os
import k1c
from k1c import hstamp, STAG, O_ST, O_DN, SPIN_MAX, WP, NP, rng
NW = 8; KSW = NKS // NW; NWPF = 2*NP
def wt_prefetch(em):
    e = em.e
    e("s_and_b32 s44, s2, 7"); e("s_lshr_b32 s45, s2, 3"); e("s_and_b32 s44, s44, 1"); e("s_lshl_b32 s44, s44, 2"); e("s_and_b32 s45, s45, 3"); e("s_add_u32 s44, s44, s45")
    srd(em, 12, 66, 67, SZ_WT, OFF_WT)
    e(f"s_mul_i32 s46, s3, {KSW*1024}"); e(f"s_mul_i32 s44, s44, {2*NKS*1024}"); e("s_add_u32 s44, s44, s46"); e(f"s_add_u32 s45, s44, {NKS*1024}")
    for ks in range(NP):
        r = WP + ks*8; hi = (ks // 4)*4096; o = (ks % 4)*1024
        for a, sb in ((0, 44), (1, 45)):
            if hi:
                e(f"s_add_u32 s46, s{sb}, {hi}"); sr = 46
            else: sr = sb
            em.vmem(f"buffer_load_dwordx4 {rng(r+4*a,4)}, v{k1c.VLANE16}, s[12:15], s{sr} offen offset:{o} sc1")
def gen_part2(em):
    DA = int(os.environ.get("K2DA", "5"))
    e = em.e
    def dstamp(n):
        if DIAG: e("s_memtime s[34:35]"); e("s_waitcnt lgkmcnt(0)"); e(f"s_sub_u32 s{n}, s34, s98")
    e("s_load_dwordx2 s[36:37], s[0:1], %d" % KA['dsk'])
    e(f"s_mov_b32 s74, s{STAG}")
    e("s_and_b32 s4, s2, 7"); e("s_lshr_b32 s5, s2, 3"); e("s_lshr_b32 s38, s4, 1"); e("s_and_b32 s39, s4, 1")
    e("s_lshl_b32 s38, s38, 3"); e("s_lshr_b32 s40, s5, 2"); e("s_add_u32 s38, s38, s40")
    e("s_lshl_b32 s39, s39, 2"); e("s_and_b32 s40, s5, 3"); e("s_add_u32 s39, s39, s40")
    e(f"s_waitcnt vmcnt({2*NP}) lgkmcnt(0)")
    e("s_barrier")
    dstamp(70); hstamp(em, 4)
    srd(em, 28, 36, 37, D*2); srd(em, 16, 62, 63, NROW*D*4)
    e("v_lshlrev_b32 v2, 4, v0")
    e(f"s_mul_i32 s41, s3, {KSW*1024}"); e(f"s_mul_i32 s42, s38, {2*NKS*1024}"); e("s_add_u32 s42, s42, s41"); e(f"s_add_u32 s43, s42, {NKS*1024}")
    e("s_cmp_lg_u32 s3, 0"); e("s_cbranch_scc1 P2_NOPOLL")
    e("s_lshl_b32 s40, s6, 4"); e("s_add_u32 s40, s40, s7"); e("s_lshl_b32 s40, s40, 4"); e(f"s_add_u32 s40, s40, {O_DN}")
    e("v_mov_b32 v12, s74"); e("v_mov_b32 v13, s74"); e("v_mov_b32 v14, 0"); e("s_mov_b64 exec, 1")
    e("buffer_store_dwordx2 v[12:13], v14, s[24:27], s40 offen sc0 sc1"); e("s_mov_b64 exec, -1")
    e("s_lshr_b32 s40, s38, 1"); e("s_lshl_b32 s40, s40, 4")
    e("v_and_b32 v12, 15, v0"); e("v_add_u32 v12, s40, v12"); e("v_lshlrev_b32 v12, 4, v12"); e(f"s_mov_b32 s40, {O_DN}")
    em.lab("P2_POLL")
    e("buffer_load_dword v13, v12, s[24:27], s40 offen sc1"); e("s_waitcnt vmcnt(0)"); e("v_cmp_ne_u32 vcc, s74, v13"); e("s_cbranch_vccz P2_NOPOLL")
    e("s_add_u32 s32, s32, 1"); e(f"s_cmp_lt_u32 s32, {SPIN_MAX}"); e("s_cbranch_scc1 P2_POLL")
    em.lab("P2_NOPOLL")
    hstamp(em, 5)
    em.vm = 2*NP; em.vm_done = 0; em.lg = 0; em.lg_done = 0
    ACC = 72; AR = 136; EP = 16
    assert AR + DA*8 <= WP
    def acc(a,b): return ACC + (2*a+b)*16
    wseq = {ks: 2*ks+1 for ks in range(NP)}; aseq = {}
    def soff(base, ks, tmp):
        hi = (ks // 4)*4096
        if hi == 0: return base, (ks % 4)*1024
        e(f"s_add_u32 s{tmp}, s{base}, {hi}"); return tmp, (ks % 4)*1024
    def issue_w(ks):
        r = WP + (ks % NP)*8
        s0, o = soff(44, ks, 46); em.vmem(f"buffer_load_dwordx4 {rng(r,4)}, v2, s[12:15], s{s0} offen offset:{o} sc1")
        s1, o = soff(45, ks, 47); wseq[ks] = em.vmem(f"buffer_load_dwordx4 {rng(r+4,4)}, v2, s[12:15], s{s1} offen offset:{o} sc1")
    def issue_a(ks):
        r = AR + (ks % DA)*8
        s0, o = soff(42, ks, 46); em.vmem(f"buffer_load_dwordx4 {rng(r,4)}, v2, s[20:23], s{s0} offen offset:{o} sc1")
        s1, o = soff(43, ks, 47); aseq[ks] = em.vmem(f"buffer_load_dwordx4 {rng(r+4,4)}, v2, s[20:23], s{s1} offen offset:{o} sc1")
    NREG = 8; NQ4 = 2
    e("v_and_b32 v3, 31, v0"); e("v_lshrrev_b32 v4, 5, v0")
    e("v_bfe_u32 v5, v3, 2, 1"); e("v_lshlrev_b32 v5, 4, v5"); e("v_lshrrev_b32 v6, 3, v3"); e("v_lshl_add_u32 v5, v6, 2, v5"); e("v_and_b32 v6, 3, v3"); e("v_add_u32 v5, v5, v6")
    e("s_lshr_b32 s51, s3, 1"); e("s_and_b32 s46, s51, 1"); e("s_lshr_b32 s47, s51, 1")
    e("s_lshl_b32 s48, s38, 6"); e("s_lshl_b32 s46, s46, 5"); e("s_add_u32 s48, s48, s46"); e("v_add_u32 v5, s48, v5")
    e("s_lshl_b32 s49, s39, 6"); e("s_lshl_b32 s47, s47, 5"); e("s_add_u32 s49, s49, s47"); e("s_and_b32 s52, s3, 1"); e("s_lshl_b32 s52, s52, 4"); e("s_add_u32 s49, s49, s52")
    e("v_lshlrev_b32 v6, 2, v4"); e("v_add_u32 v6, s49, v6")
    e("v_lshlrev_b32 v7, 3, v5"); e("v_lshlrev_b32 v8, 10, v5"); e("v_lshl_add_u32 v8, v6, 1, v8"); e("v_lshlrev_b32 v9, 1, v6")
    e("v_lshlrev_b32 v10, 11, v5"); e("v_lshl_add_u32 v10, v6, 2, v10")
    XS = EP; DS = EP+4; ST = EP+8; T = EP + 10; RES = EP + 16
    for q in range(NQ4): em.vmem(f"buffer_load_dwordx2 {rng(XS+2*q,2)}, v8, s[8:11], 0 offen offset:{16*q}")
    for q in range(NQ4): em.vmem(f"buffer_load_dwordx2 {rng(DS+2*q,2)}, v9, s[28:31], 0 offen offset:{16*q}")
    e("s_barrier")
    dstamp(71)
    for ks in range(min(DA, KSW)): issue_a(ks)
    sq_ep = em.vmem(f"buffer_load_dwordx2 {rng(ST,2)}, v7, s[24:27], 0 offen offset:{O_ST} sc1")
    rq = [lambda: em.wait_vm(sq_ep), f"v_lshlrev_b32 v12, 16, v{ST}", f"v_and_b32 v13, 0xffff0000, v{ST}", "v_rcp_f32 v13, v13", "s_nop 0"]
    for q in range(NQ4):
        for d2 in range(2):
            xr = XS + 2*q + d2; dr = DS + 2*q + d2
            rq += [f"v_lshlrev_b32 v{T}, 16, v{xr}", f"v_and_b32 v{T+1}, 0xffff0000, v{xr}", f"v_sub_f32 v{T+2}, v{T}, v12", f"v_sub_f32 v{T+3}, v{T+1}, v12",
                f"v_cvt_pk_bf16_f32 v{T+2}, v{T+2}, v{T+3}", f"v_lshlrev_b32 v{T+3}, 16, v{T+2}", f"v_and_b32 v{T+2}, 0xffff0000, v{T+2}",
                f"v_mul_f32 v{T+3}, v{T+3}, v13", f"v_mul_f32 v{T+2}, v{T+2}, v13",
                f"v_cvt_pk_bf16_f32 v{T+2}, v{T+3}, v{T+2}", f"v_lshlrev_b32 v{T+3}, 16, v{T+2}", f"v_and_b32 v{T+2}, 0xffff0000, v{T+2}",
                f"v_lshlrev_b32 v{T+4}, 16, v{dr}", f"v_and_b32 v{T+5}, 0xffff0000, v{dr}", f"v_mul_f32 v{T+3}, v{T+3}, v{T+4}", f"v_mul_f32 v{T+2}, v{T+2}, v{T+5}",
                f"v_cvt_pk_bf16_f32 v{T+2}, v{T+3}, v{T+2}", f"v_lshlrev_b32 v{T+3}, 16, v{T+2}", f"v_and_b32 v{T+2}, 0xffff0000, v{T+2}",
                f"v_add_f32 v{RES+4*q+2*d2}, v{T+3}, v{T}", f"v_add_f32 v{RES+4*q+2*d2+1}, v{T+2}, v{T+1}"]
    for ks in range(KSW):
        em.wait_vm(max(wseq[ks], aseq[ks]))
        w = WP + (ks % NP)*8; a_ = AR + (ks % DA)*8
        for a in range(2):
            for b in range(2):
                c = "0" if ks == 0 else rng(acc(a,b),16)
                e(f"v_mfma_f32_32x32x16_bf16 {rng(acc(a,b),16)}, {rng(w+4*a,4)}, {rng(a_+4*b,4)}, {c}")
                if ks >= 3:
                    for _ in range(4):
                        if rq:
                            x = rq.pop(0); x() if callable(x) else e(x)
        if ks + NP < KSW: issue_w(ks + NP)
        if ks + DA < KSW: issue_a(ks + DA)
    while rq:
        x = rq.pop(0); x() if callable(x) else e(x)
    dstamp(72); hstamp(em, 6)
    e("s_nop 15")
    e(f"s_mul_i32 s50, s3, {NQ4*1024}"); e("v_add_u32 v11, s50, v2"); e("v_add_u32 v14, 65536, v11")
    for o in range(NW):
        base = ACC + o*NREG
        for r4 in range(NQ4):
            off = o*NW*NQ4*1024 + r4*1024
            em.lds(f"ds_write_b128 v{11 if off < 65536 else 14}, {rng(base+4*r4,4)} offset:{off % 65536}")
    e("s_waitcnt lgkmcnt(0)"); em.lg_done = em.lg
    e("s_barrier")
    e(f"s_mul_i32 s50, s3, {NW*NQ4*1024}"); e("v_add_u32 v11, s50, v2")
    RD = WP
    for w in range(NW):
        for r4 in range(NQ4): em.lds(f"ds_read_b128 {rng(RD+w*NREG+r4*4,4)}, v11 offset:{w*NQ4*1024 + r4*1024}")
    e("s_waitcnt lgkmcnt(0)"); em.lg_done = em.lg
    n = NW
    while n > 1:
        for w in range(n//2):
            for i in range(NREG): e(f"v_add_f32 v{RD+w*NREG+i}, v{RD+w*NREG+i}, v{RD+(w+n//2)*NREG+i}")
        n //= 2
    for i in range(NREG): e(f"v_add_f32 v{RD+i}, v{RD+i}, v{RES+i}")
    dstamp(73)
    for q in range(NQ4): em.vmem(f"buffer_store_dwordx4 {rng(RD+4*q,4)}, v10, s[16:19], 0 offen offset:{32*q}")
```

```python
import sys
from common import *
from k2 import gen_k2
HEADER = open("parallel_sum__ssm_conv_s5__glu_gated_swiglu__prompt.s.ref").read().split("; Override launch geometry")[0]
def build(kernels, path):
    s = HEADER
    import os
    single = len(kernels) == 1 and os.environ.get("SINGLE", "1") == "1"
    if single:
        KN = "parallel_sum__ssm_conv_s5__glu_gated_swiglu__prompt_kernel"
        (name, text, kdt, lds, grid, block) = kernels[0]
        kernels = [(KN, text.replace(name, KN), kdt.replace(name, KN), lds, grid, block)]
        s += f"; @launch grid=({grid},1,1) block=({block},1,1) lds={lds}\n"
    else:
      for (name, text, kdt, lds, grid, block) in kernels:
        s += f"; @launch kernel={name} grid=({grid},1,1) block=({block},1,1) lds={lds}\n"
    s += '.amdgcn_target "amdgcn-amd-amdhsa--gfx950"\n.text\n'
    for k in kernels: s += k[1]
    s += '.section .rodata,"a"\n'
    for k in kernels: s += k[2]
    open(path, "w").write(s)
if __name__ == "__main__":
    which = sys.argv[1]; path = sys.argv[2]
    ks = []
    if which == "L":
        from k1d import gen_k1
        t, k, lds = gen_k1(); ks.append(("k1_kernel", t, k, lds, 256, 512))
    if which == "G":
        from k1c import gen_k1
        t, k, lds = gen_k1(); ks.append(("k1_kernel", t, k, lds, 256, 512))
    if which == "F":
        from k1b import gen_k1
        t, k, lds = gen_k1(); ks.append(("k1_kernel", t, k, lds, 256, 512))
    if "1" in which:
        from k1b import gen_k1
        t, k, lds = gen_k1(); ks.append(("k1_kernel", t, k, lds, 256, 512))
    if "2" in which:
        t, k, lds = gen_k2(); ks.append(("k2_kernel", t, k, lds, 256, 256))
    build(ks, path)
```

```python
import k1b
from k1b import *

def gen_ch(ch, top, sq_stage_in, sq_lam):
    em = Em(); em.vm = top.vm; em.vm_done = top.vm_done; e = em.e
    st = Stream(em)
    sq_stage = dict(sq_stage_in); sq_t4 = {}; sq_t1 = {}
    C = f"C{ch}"
    em.lab(f"K1_CH{ch}")
    base_now = {}
    def set_base(regs, key, base):
        hi = base & ~0x7fff; cur = base_now.get(key, 0)
        if hi != cur:
            for r in regs:
                d = hi - cur
                em.e(f"v_add_u32 v{r}, {d}, v{r}" if d > 0 else f"v_subrev_u32 v{r}, {-d}, v{r}")
            base_now[key] = hi
        return base - hi
    def x_read(kb, s4):
        imm = set_base(range(VXR, VXR+4), "x", X_base(kb))
        return em.lds(f"ds_read_b128 {rng(xf(4*kb+s4),4)}, v{VXR+s4} offset:{imm}")
    def ssm_read(dst, kb, s4, im):
        imm = set_base(range(VBR, VBR+4), "b", S0_base(kb))
        return em.lds(f"ds_read_b128 {rng(dst,4)}, v{VBR+s4} offset:{imm + 4096*im}")
    def t2_read(dst, base, s, j):
        imm = set_base((VT2A, VT2B), "t2", base)
        r = VT2A if j == 0 else VT2B
        em.lds(f"ds_read_b64_tr_b16 {rng(dst,2)}, v{r} offset:{imm + s*1024}")
        return em.lds(f"ds_read_b64_tr_b16 {rng(dst+2,2)}, v{r} offset:{imm + s*1024 + 256}")
    def t1_read(dst, base, s):
        imm = set_base((VT1R,), "t1", base)
        em.lds(f"ds_read_b64_tr_b16 {rng(dst,2)}, v{VT1R} offset:{imm + s*1024}")
        return em.lds(f"ds_read_b64_tr_b16 {rng(dst+2,2)}, v{VT1R} offset:{imm + s*1024 + 256}")
    def t4_read(dst, base, s, n_):
        imm = set_base((VT4A, VT4B), "t4", base)
        r = VT4A if n_ == 0 else VT4B
        em.lds(f"ds_read_b64_tr_b16 {rng(dst,2)}, v{r} offset:{imm + s*2048}")
        return em.lds(f"ds_read_b64_tr_b16 {rng(dst+2,2)}, v{r} offset:{imm + s*2048 + 512}")
    units = []
    for ks in range(32):
        kb, s4 = ks // 4, ks % 4
        bar = f"B{kb}" if (s4 == 0 and kb > 0) else None
        for j in range(2):
            if ch == 0: rd = (lambda d, kb=kb, s4=s4, j=j: ssm_read(d, kb, s4, j)); ori = "xa"
            else: rd = (lambda d, kb=kb, s4=s4, j=j: t2_read(d, A0_base(kb), s4, j)); ori = "wa"
            units.append(dict(p=0, ks=ks, acc=64+16*j, ori=ori, rd=rd, xr=((kb, s4) if j == 0 else None), bar=(bar if j == 0 else None)))
    if ch == 1:
        for ks in range(32):
            kb, s4 = ks // 4, ks % 4
            units.append(dict(p=1, ks=ks, acc=96, ori="wa", rd=(lambda d, kb=kb, s4=s4: t1_read(d, T1_base[kb], s4)), xr=None, bar={0: "B8", 16: "B8a"}.get(ks)))
    else:
        for ks in range(32):
            units.append(dict(p=1, ks=ks, idle=True, xr=None, bar={0: "B8", 16: "B8a"}.get(ks)))
    for sub in range(2):
        for ks in range(32):
            kb, s4 = ks // 4, ks % 4
            acc = (96 + 16*sub) if ch == 0 else (112 if sub == 0 else 64)
            bar = {0: "B9", 20: "B9a", 24: "B9b"}.get(ks) if sub == 0 else None
            units.append(dict(p=2+sub, ks=ks, acc=acc, ori="wa", rd=(lambda d, kb=kb, s4=s4, sub=sub: t4_read(d, T4_base[kb], s4, sub)), xr=None, bar=bar))
    stamp_n = [0]
    def stamp():
        if DIAG and ch == 1:
            e("s_memtime s[34:35]"); e("s_waitcnt lgkmcnt(0)"); em.lg_done = em.lg
            e("s_sub_u32 s34, s34, s98")
            e(f"v_writelane_b32 v19, s34, {stamp_n[0]}"); stamp_n[0] += 1
    stamp0 = stamp
    dq = []
    def dma_items(it):
        kind, i = it
        if ONLYST and kind != "stage":
            if kind == "mini": sq_stage["mini"] = 0
            if kind == "t4": sq_t4[i] = 0
            if kind == "t1": sq_t1[i] = 0
            return []
        if kind == "stage":
            def fx0(): dma(em, 8, VX0, 78, ta(i), 76, X_base(i))
            def fx1(): dma(em, 8, VX1, 78, ta(i), 76, X_base(i) + 1024)
            def fs(): dma_S0(em, i)
            def ft(): sq_stage[i] = dma_T2(em, i, A0_base(i), 80)
            return [fx0, fx1, fs, ft]
        if kind == "mini":
            def fm():
                em.L += mini_dma_lines(C)
                sq_stage["mini"] = em.vm - 1
            return [fm]
        if kind == "t4":
            def f0(): dma(em, 16, VT4, 81, tb(i), 77, T4_base[i])
            def f1():
                em.e(f"s_add_u32 m0, s77, {T4_base[i] + 1024}"); em.e(f"s_add_u32 s84, s84, {8*3584}")
                sq_t4[i] = em.vmem(f"buffer_load_dwordx4 v{VT4}, s[16:19], s84 offen lds")
            return [f0, f1]
        if kind == "p2":
            if PREF != 1: return []
            def f():
                e(f"s_mov_b32 s84, {i*256*3584}")
                em.vmem(f"buffer_load_dword v127, v{VP2}, s[16:19], s84 offen")
            return [f]
        if kind == "t1":
            def f(): sq_t1[i] = dma_T2(em, i, T1_base[i], 82)
            return [f]
    def drain_dq(n=10**9):
        while dq and n > 0:
            dq.pop(0)(); n -= 1
    def barrier(name):
        if FINE:
            def stamp(): pass
        else:
            stamp = stamp0
        drain_dq()
        if NOBAR:
            stamp(); stamp()
            for it in DMA_SCHED.get(name, []): dq.extend(dma_items(it))
            return
        if name == SEG_BAR and ch == 0 and not NOCOMP: st.flush_until("seg_written")
        if name[1:].isdigit() and 1 <= int(name[1:]) <= 7: em.wait_vm(sq_stage[int(name[1:])])
        if name == MINI_AT: em.wait_vm(sq_stage["mini"])
        if name == "B8": em.wait_vm(sq_t1[6])
        if name == "B8a": em.wait_vm(sq_t1[7])
        if name == "B9": em.wait_vm(sq_t4[4])
        if name == "B9a": em.wait_vm(sq_t4[5])
        if name == "B9b": em.wait_vm(sq_t4[7])
        if name == WTF_BAR and FUSED and ch == 0 and not NOCOMP:
            st.flush_until("sj_done"); em.wait_vm(holder["sjst"])
        e("s_waitcnt lgkmcnt(0)"); em.lg_done = em.lg
        stamp()
        e("s_barrier")
        stamp()
        st.signal(name)
        if name == "B8" and ch == 0: hstamp(em, 3); em.lg_done = em.lg
        if name == WTF_BAR and FUSED and ch == 0 and not NOCOMP:
            for l in ["s_cmp_lg_u32 s3, 0", "s_cbranch_scc1 K1_NOWTF",
                      "s_lshl_b32 s90, s6, 4", "s_add_u32 s90, s90, s7", "s_lshl_b32 s90, s90, 4", f"s_add_u32 s90, s90, {O_DN + 8}",
                      f"v_mov_b32 v2, s{STAG}", f"v_mov_b32 v3, s{STAG}", "v_mov_b32 v4, 0", "s_mov_b64 exec, 1",
                      "buffer_store_dwordx2 v[2:3], v4, s[24:27], s90 offen sc0 sc1", "s_mov_b64 exec, -1"]: e(l)
            em.lab("K1_NOWTF")
        if name == GATHER_AT and not NOCOMP:
            for f_ in issue_stats(10) + issue_cs_all(): f_(em)
        for it in DMA_SCHED.get(name, []): dq.extend(dma_items(it))
        if name == MINI_AT and ch == 0 and not NOCOMP:
            for l in mini_compute(base_now.get("t2", 0), base_now.get("b", 0)):
                if l.endswith(":"): em.L.append(l)
                else: e(l)
    e("s_lshl_b32 s68, s6, 2"); e("s_add_u32 s68, s68, s4"); e(f"s_mul_i32 s68, s68, {NKS*1024}")
    e("s_mul_i32 s69, s7, 9"); e("s_lshl_b32 s69, s69, 10"); e(f"s_add_u32 s69, s69, {O_CS}")
    e("s_lshl_b32 s71, s6, 7"); e("s_lshl_b32 s90, s4, 5"); e("s_add_u32 s71, s71, s90"); e("s_lshl_b32 s71, s71, 3")
    holder = {}
    if DIAG and ch == 1:
        em.wait_vm(sq_lam)
        for i_, r_ in enumerate((95, 94, 100, 101)): e(f"v_writelane_b32 v19, s{r_}, {40+i_}")
    stamp()
    def issue_stats(dst):
        def f(em_):
            holder["st"] = tagged_load(em_, [f"v_lshlrev_b32 v{dst}, 3, v{VPI}"],
                [f"buffer_load_dwordx2 {rng(dst,2)}, v{dst}, s[24:27], s71 offen offset:{O_ST} sc1"], [dst+1], f"K1{C}_ST")
        return [f]
    def proc_stats(src):
        return [lambda em_: holder["st"](em_),
                f"v_and_b32 v{VRS}, 0xffff0000, v{src}",
                f"v_mul_f32 v{VI2}, v{VRS}, v{VRS}",
                f"v_rcp_f32 v{VRS}, v{VRS}",
                f"v_and_b32 v{src+1}, 0xffff, v{src}",
                f"v_xor_b32 v{src+1}, 0x8000, v{src+1}",
                f"v_cmp_gt_u32 vcc, 32, v0",
                f"v_lshl_or_b32 v{src}, v{src+1}, 16, v{src+1}",
                f"v_mul_f32 v{VC1}, {NLOG2E}, v{VRS}",
                f"v_cndmask_b32 v{src}, 0, v{src}, vcc",
                f"v_cndmask_b32 v{src+1}, 0, v{src+1}, vcc"]
    def set_xm(src):
        return [f"v_mov_b32 v{VXM}, v{src}", f"v_mov_b32 v{VXM+1}, v{src+1}", f"v_mov_b32 v{VXM+2}, 0", f"v_mov_b32 v{VXM+3}, 0",
                f"v_mov_b32 v{FR+2}, 0", f"v_mov_b32 v{FR+3}, 0"]
    FR = 12
    VCSA = 26 if ch == 1 else 24
    tiles = [0, 1, 4, 5] if ch == 0 else [2, 3, 6, 7, 8]
    GC = {t: 108 + 4*n for n, t in enumerate(tiles)}
    def issue_cs_all():
        out = []
        for t in tiles:
            def f(em_, t=t):
                holder[("cs", t)] = tagged_load(em_, [f"s_add_u32 s90, s69, {t*1024}"],
                    [f"buffer_load_dwordx4 {rng(GC[t],4)}, v{VLANE16}, s[24:27], s90 offen sc1"], [GC[t]+1, GC[t]+3], f"K1{C}_CS{t}")
            out.append(f)
        return out
    def build_csf_all():
        seq = []
        for t in tiles: seq.append(lambda em_, t=t: holder[("cs", t)](em_))
        for t in tiles: g = GC[t]; seq += [f"v_add_f32 v{g}, v{g}, v{g+2}"]
        for t in tiles: g = GC[t]; seq += [f"v_mov_b32 v{g+1}, v{g}"]
        seq.append("s_nop 1")
        for t in tiles: g = GC[t]; seq += [f"v_permlane32_swap_b32 v{g}, v{g+1}"]
        seq.append("s_nop 1")
        for t in tiles: g = GC[t]; seq += [f"v_add_f32 v{g+2}, v{g}, v{g+1}"]
        for t in tiles: g = GC[t]; seq += [f"v_cvt_pk_bf16_f32 v{g+3}, v{g+2}, v{g+2}"]
        for t in tiles: g = GC[t]; seq += [f"v_lshlrev_b32 v{g+3}, 16, v{g+3}"]
        for t in tiles: g = GC[t]; seq += [f"v_sub_f32 v{g+3}, v{g+2}, v{g+3}"]
        for t in tiles: g = GC[t]; seq += [f"v_cvt_pk_bf16_f32 v{g}, v{g+2}, v{g+3}"]
        for t in tiles: g = GC[t]; seq += [f"v_and_b32 v{g+2}, 0xffff0000, v{g}"]
        for t in tiles: g = GC[t]; seq += [f"v_sub_f32 v{g+3}, v{g+3}, v{g+2}"]
        for t in tiles: g = GC[t]; seq += [f"v_cvt_pk_bf16_f32 v{g+1}, v{g+3}, 0"]
        seq += [f"v_lshlrev_b32 v2, 3, v0", f"v_add_u32 v2, {L_CSF + ch*2560}, v2"]
        for n, t in enumerate(tiles):
            seq.append(lambda em_, n=n, t=t: em_.lds(f"ds_write_b64 v2, {rng(GC[t],2)} offset:{512*n}"))
        return seq
    def corr(tile, acc, ori):
        n = tiles.index(tile)
        seq = [f"v_lshlrev_b32 v{FR+1}, 3, v0", f"v_add_u32 v{FR+1}, {L_CSF + ch*2560}, v{FR+1}",
               lambda em_: holder.__setitem__("cf", em_.lds(f"ds_read_b64 {rng(FR,2)}, v{FR+1} offset:{512*n}")),
               lambda em_: em_.wait_lg(holder["cf"])]
        if ori == "wa": seq.append(f"v_mfma_f32_32x32x16_bf16 {rng(acc,16)}, {rng(FR,4)}, {rng(VXM,4)}, {rng(acc,16)}")
        else: seq.append(f"v_mfma_f32_32x32x16_bf16 {rng(acc,16)}, {rng(VXM,4)}, {rng(FR,4)}, {rng(acc,16)}")
        return seq
    def ffn_epi(acc, sreg, jadd, nop=True):
        T = 6; seq = ["s_nop 7", "s_nop 3"] if nop else []
        for i in range(0, 4, 2):
            pass
        for i in range(4):
            g0, g1, u0, u1 = acc+2*i, acc+2*i+1, acc+8+2*i, acc+8+2*i+1
            seq += [f"v_mul_f32 v{T}, v{g0}, v{VC1}", f"v_mul_f32 v{T+1}, v{g1}, v{VC1}",
                    f"v_exp_f32 v{T}, v{T}", f"v_exp_f32 v{T+1}, v{T+1}",
                    f"v_mul_f32 v{T+2}, v{g0}, v{u0}", f"v_mul_f32 v{T+3}, v{g1}, v{u1}",
                    f"v_fma_f32 v{T}, v{T}, v{VI2}, v{VI2}", f"v_fma_f32 v{T+1}, v{T+1}, v{VI2}, v{VI2}",
                    f"v_rcp_f32 v{T}, v{T}", f"v_rcp_f32 v{T+1}, v{T+1}"]
            if i == 3: seq += [f"s_lshl_b32 s90, s{sreg}, 5"]
            else: seq += [f"s_nop 0"]
            seq += [f"v_mul_f32 v{T+2}, v{T+2}, v{T}", f"v_mul_f32 v{T+3}, v{T+3}, v{T+1}",
                    f"v_cvt_pk_bf16_f32 v{2+i}, v{T+2}, v{T+3}"]
        seq += [f"s_add_u32 s90, s90, s68", f"s_add_u32 s90, s90, {(64+jadd)*1024}",
                lambda em_: em_.vmem(f"buffer_store_dwordx4 v[2:5], v{VLANE16}, s[20:23], s90 offen{SC}"),
                "s_nop 0"]
        return seq
    sj_ld, sj_st = side_job(96)
    if ch == 1:
        st.add([("after", PROC_AT)] + proc_stats(10) + build_csf_all() + [("mark", "pre_p1")])
        st.add([("after", "p0done")] + set_xm(10))
        st.add(corr(2, 64, "wa") + corr(3, 80, "wa") + ["s_nop 7"] + ffn_epi(64, 80, 0, False) + [("mark", "acc64_free")])
        st.add(ffn_epi(80, 80, 1, False))
        st.add([("after", "p1done")])
        st.add(corr(8, 96, "wa") + ffn_epi(96, 79, 0))
        st.add([("after", "p2done")])
        st.add(corr(6, 112, "wa") + ffn_epi(112, 81, 2))
        st.add([("after", "p3done")])
        st.add(corr(7, 64, "wa") + ffn_epi(64, 81, 3))
    else:
        LAM, L16, L128, CO2, CC, PW, EE = 56, 58, 60, 62, 32, 34, 25
        RE, IM = 64, 80
        def csq(dst, src, t):
            return [f"v_mul_f32 v{t}, v{src}, v{src}", f"v_mul_f32 v{t+1}, v{src}, v{src+1}",
                    f"v_fma_f32 v{dst}, -v{src+1}, v{src+1}, v{t}", f"v_add_f32 v{dst+1}, v{t+1}, v{t+1}"]
        lam = [lambda em_: em_.wait_vm(sq_lam),
               f"v_lshlrev_b32 v2, 16, v{VLRE}", f"v_lshlrev_b32 v3, 16, v{VLIM}", f"v_lshlrev_b32 v4, 16, v{VLDT}",
               f"v_mul_f32 v4, {LOG2E}, v4", "v_exp_f32 v4, v4", "s_nop 0",
               "v_cvt_pk_bf16_f32 v4, v4, v4", "v_lshlrev_b32 v4, 16, v4",
               "v_mul_f32 v5, v4, v2", "v_mul_f32 v6, v4, v3",
               f"v_mul_f32 v5, {LOG2E}, v5", f"v_mul_f32 v6, {INV2PI}, v6",
               "v_exp_f32 v5, v5", "v_fract_f32 v6, v6", "s_nop 0",
               "v_cos_f32 v7, v6", "v_sin_f32 v8, v6", "s_nop 0",
               f"v_mul_f32 v{LAM}, v5, v7", f"v_mul_f32 v{LAM+1}, v5, v8",
               f"v_subrev_f32 v7, 1.0, v{LAM}",
               "v_mul_f32 v9, v2, v2", "v_fma_f32 v9, v3, v3, v9", "v_rcp_f32 v9, v9",
               "v_mul_f32 v10, v7, v2", f"v_fma_f32 v10, v{LAM+1}, v3, v10",
               f"v_mul_f32 v11, v{LAM+1}, v2", "v_fma_f32 v11, -v7, v3, v11",
               "v_add_f32 v9, v9, v9",
               f"v_mul_f32 v{CO2}, v10, v9", f"v_mul_f32 v{CO2+1}, v11, v9"]
        lam += csq(L16, LAM, 2) + csq(L16, L16, 2) + csq(L16, L16, 2) + csq(L16, L16, 2)
        lam += csq(L128, L16, 2) + csq(L128, L128, 2) + csq(L128, L128, 2)
        PWA, PWB = 1, 18
        lam += csq(2, L16, 4)
        lam += csq(6, 2, 4)
        lam += [f"v_mul_f32 v8, v2, v6", f"v_mul_f32 v9, v2, v7", f"v_fma_f32 v8, -v3, v7, v8", f"v_fma_f32 v9, v3, v6, v9",
                [f"s_cmp_eq_u32 s4, 1", "s_cselect_b64 s[92:93], -1, 0"], "v_mov_b32 v10, 1.0", "v_mov_b32 v11, 0",
                "v_cndmask_b32 v10, v10, v2, s[92:93]", "v_cndmask_b32 v11, v11, v3, s[92:93]",
                [f"s_cmp_eq_u32 s4, 2", "s_cselect_b64 s[92:93], -1, 0"],
                "v_cndmask_b32 v10, v10, v6, s[92:93]", "v_cndmask_b32 v11, v11, v7, s[92:93]",
                [f"s_cmp_eq_u32 s4, 3", "s_cselect_b64 s[92:93], -1, 0"],
                "v_cndmask_b32 v10, v10, v8, s[92:93]", "v_cndmask_b32 v11, v11, v9, s[92:93]",
                f"v_mul_f32 v2, v{L16}, v10", f"v_mul_f32 v3, v{L16}, v11", f"v_fma_f32 v2, -v{L16+1}, v11, v2", f"v_fma_f32 v3, v{L16+1}, v10, v3",
                "v_cmp_lt_u32 vcc, 31, v0", "s_nop 1",
                f"v_cndmask_b32 v{PWA}, v10, v2, vcc", f"v_cndmask_b32 v{PWB}, v11, v3, vcc"]
        st.add([("after", "B3")] + lam)
        st.add([("after", PROC_AT)] + proc_stats(10) + build_csf_all())
        st.add([f"s_lshl_b32 s86, s4, 7", f"s_add_u32 s86, s86, {L_RS}", f"v_lshlrev_b32 v2, 2, v{VPI}", f"v_add_u32 v2, s86, v2",
                lambda em_: em_.lds(f"ds_write_b32 v2, v{VRS}")])
        st.add([("mark", "pre_sj")] + sj_ld)
        st.add([("after", "p0done")] + set_xm(10))
        st.add(sj_st + [lambda em_: holder.__setitem__("sjst", em_.vm - 1), ("mark", "sj_done")])
        st.add(corr(0, RE, "xa") + corr(1, IM, "xa"))
        seqs = ["v_lshrrev_b32 v3, 5, v0", "v_lshlrev_b32 v3, 6, v3", f"v_add_u32 v3, s86, v3"]
        for q in range(2):
            seqs.append(lambda em_, q=q: holder.__setitem__(("rs", q), em_.lds(f"ds_read_b128 {rng(4+4*q,4)}, v3 offset:{16*q}")))
        seqs += [lambda em_: em_.wait_lg(holder[("rs", 0)]), "s_nop 7"]
        for q in range(4):
            R = 4 + 4*(q % 2)
            if q >= 1: seqs.append(lambda em_, q=q: em_.wait_lg(holder[("rs", q)]))
            for i in range(4): seqs += [f"v_mul_f32 v{RE+4*q+i}, v{RE+4*q+i}, v{R+i}", f"v_mul_f32 v{IM+4*q+i}, v{IM+4*q+i}, v{R+i}"]
            if q < 2: seqs.append(lambda em_, q=q, R=R: holder.__setitem__(("rs", q+2), em_.lds(f"ds_read_b128 {rng(R,4)}, v3 offset:{16*(q+2)}")))
        st.add(seqs)
        st.add([f"v_fma_f32 v2, v{LAM}, v{RE}, v{RE+1}", f"v_fma_f32 v3, v{LAM}, v{IM}, v{IM+1}",
                f"v_fma_f32 v2, -v{LAM+1}, v{IM}, v2", f"v_fma_f32 v3, v{LAM+1}, v{RE}, v3"])
        cur = 2
        for r in range(2, 16):
            nx = 6 - cur
            st.add([f"v_fma_f32 v{nx}, v{LAM}, v{cur}, v{RE+r}", f"v_fma_f32 v{nx+1}, v{LAM}, v{cur+1}, v{IM+r}",
                    f"v_fma_f32 v{nx}, -v{LAM+1}, v{cur+1}, v{nx}", f"v_fma_f32 v{nx+1}, v{LAM+1}, v{cur}, v{nx+1}"])
            cur = nx
        st.add([f"s_lshl_b32 s90, s4, 9", f"s_add_u32 s90, s90, {L_SEG}", "v_lshlrev_b32 v6, 3, v0", "v_add_u32 v6, s90, v6",
                lambda em_, cur=cur: em_.lds(f"ds_write_b64 v6, {rng(cur,2)}"),
                ("mark", "seg_written"), ("after", SEG_BAR)])
        SG = 116
        def rd_seg(em_):
            for s_ in range(6): holder["seg"] = em_.lds(f"ds_read_b64 {rng(SG+2*s_,2)}, v6 offset:{256*s_}")
        blk = []
        ec, en = CC, 2
        blk += [f"v_mov_b32 v{CC}, 0", f"v_mov_b32 v{CC+1}, 0"]
        for s_ in range(6):
            if s_ % 2 == 0: blk += [f"s_cmp_le_u32 s4, {s_//2}", f"s_cbranch_scc1 K1{C}_SGD"]
            blk += [f"v_fma_f32 v2, v{L16}, v{CC}, v{SG+2*s_}", f"v_fma_f32 v3, v{L16}, v{CC+1}, v{SG+1+2*s_}",
                    f"v_fma_f32 v2, -v{L16+1}, v{CC+1}, v2", f"v_fma_f32 v{CC+1}, v{L16+1}, v{CC}, v3", f"v_mov_b32 v{CC}, v2"]
        blk.append(lambda em_: em_.lab(f"K1{C}_SGD"))
        st.add(["v_and_b32 v6, 31, v0", "v_lshlrev_b32 v6, 3, v6", f"v_add_u32 v6, {L_SEG}, v6", rd_seg,
                "s_lshl_b32 s90, s4, 9", "v_add_u32 v7, s90, v6",
                lambda em_: em_.lds(f"ds_read_b64 v[8:9], v7"), lambda em_: holder.__setitem__("e2", em_.lds(f"ds_read_b64 v[10:11], v7 offset:256")),
                lambda em_: em_.wait_lg(holder["e2"]), blk,
                f"v_fma_f32 v2, v{L16}, v{CC}, v8", f"v_fma_f32 v3, v{L16}, v{CC+1}, v9",
                f"v_fma_f32 v2, -v{L16+1}, v{CC+1}, v2", f"v_fma_f32 v3, v{L16+1}, v{CC}, v3",
                f"v_fma_f32 v4, v{L16}, v2, v10", f"v_fma_f32 v6, v{L16}, v3, v11",
                f"v_fma_f32 v4, -v{L16+1}, v3, v4", f"v_fma_f32 v6, v{L16+1}, v2, v6",
                "v_cmp_lt_u32 vcc, 31, v0", f"v_mov_b32 v5, s{STAG}", f"v_mov_b32 v7, s{STAG}",
                f"v_cndmask_b32 v{CC}, v{CC}, v2, vcc", f"v_cndmask_b32 v{CC+1}, v{CC+1}, v3, vcc",
                "s_lshl_b32 s90, s7, 4", "s_add_u32 s90, s90, s6", "s_lshl_b32 s90, s90, 9", f"s_add_u32 s90, s90, {O_E}",
                ["s_cmp_eq_u32 s4, 3", "s_cselect_b32 exec_lo, -1, 0", "s_mov_b32 exec_hi, 0",
                 f"s_cbranch_execz K1{C}_NOPUB",
                 f"buffer_store_dwordx4 v[4:7], v{VLANE16}, s[24:27], s90 offen sc0 sc1",
                 lambda em_: em_.lab(f"K1{C}_NOPUB"),
                 "s_mov_b64 exec, -1", "s_nop 1"]])
        EG = xf(8); HH = xf(6)
        st.add([("mark", "sg_free"), ("mark", "pre_p1"), ("after", "p2done")])
        st.add(corr(4, 96, "wa") + ffn_epi(96, 81, 0))
        st.add([("after", "p3s24")])
        def issue_E(em_):
            holder["E"] = [em_.vmem(f"buffer_load_dwordx4 {rng(EG+4*j,4)}, v2, s[24:27], s{90 + (j//8)} offen offset:{512*(j%8)} sc1") for j in range(16)]
        epre = ["s_lshl_b32 s90, s7, 13", f"s_add_u32 s90, s90, {O_E}", "s_add_u32 s91, s90, 4096", "v_and_b32 v2, 31, v0", "v_lshlrev_b32 v2, 4, v2"]
        st.add(epre + [issue_E])
        st.add([("after", "p3done")])
        st.add(corr(5, 112, "wa") + ffn_epi(112, 81, 1))
        def tagchk():
            L = ["v_mov_b32 v3, 0"]
            for j in range(15):
                L += [f"s_cmp_le_u32 s6, {j}", f"s_cbranch_scc1 K1{C}_TCD@", f"v_xor_b32 v4, s{STAG}, v{EG+4*j+1}", f"v_xor_b32 v5, s{STAG}, v{EG+4*j+3}", "v_or3_b32 v3, v3, v4, v5"]
            L += [f"K1{C}_TCD@:", "v_cmp_ne_u32 vcc, 0, v3"]
            return L
        def echeck(em_):
            em_.wait_vm(holder["E"][-1])
            if NOTAG: return
            for l in tagchk():
                l = l.replace("@", "F")
                if l.endswith(":"): em_.L.append(l)
                else: em_.e(l)
            em_.e(f"s_cbranch_vccnz K1{C}_E_SLOW"); em_.lab(f"K1{C}_E_OK")
            sp = [f"K1{C}_E_SLOW:", "    s_sleep 1"] + ["    " + x for x in epre]
            sp += [f"    buffer_load_dwordx4 {rng(EG+4*j,4)}, v2, s[24:27], s{90 + (j//8)} offen offset:{512*(j%8)} sc1" for j in range(16)]
            sp.append("    s_waitcnt vmcnt(0)")
            sp += [(x.replace("@", "S") if x.endswith(":") else "    " + x.replace("@", "S")) for x in tagchk()]
            sp += [f"    s_cbranch_vccz K1{C}_E_OK", "    s_add_u32 s32, s32, 1", f"    s_cmp_lt_u32 s32, {SPIN_MAX}", f"    s_cbranch_scc1 K1{C}_E_SLOW", f"    s_branch K1{C}_E_OK"]
            slow_paths.append("\n".join(sp))
        hb = [f"v_mov_b32 v{HH}, 0", f"v_mov_b32 v{HH+1}, 0"]
        for j in range(15):
            R = EG + 4*j
            hb += [f"s_cmp_le_u32 s6, {j}", f"s_cbranch_scc1 K1{C}_HD",
                   f"v_fma_f32 v2, v{L128}, v{HH}, v{R}", f"v_fma_f32 v3, v{L128}, v{HH+1}, v{R+2}",
                   f"v_fma_f32 v2, -v{L128+1}, v{HH+1}, v2", f"v_fma_f32 v{HH+1}, v{L128+1}, v{HH}, v3", f"v_mov_b32 v{HH}, v2"]
        hb.append(lambda em_: em_.lab(f"K1{C}_HD"))
        st.add([[echeck], hb])
        st.add([f"v_fma_f32 v{CC}, v{PWA}, v{HH}, v{CC}", f"v_fma_f32 v{CC+1}, v{PWA}, v{HH+1}, v{CC+1}",
                f"v_fma_f32 v{CC}, -v{PWB}, v{HH+1}, v{CC}", f"v_fma_f32 v{CC+1}, v{PWB}, v{HH}, v{CC+1}"])
        st.add([("after", "B9"), f"s_mul_i32 s90, s4, 4608", f"s_add_u32 s90, s90, {HT_A}", ["s_cmp_eq_u32 s4, 3", f"s_cselect_b32 s90, {HT_B}, s90"], "v_lshrrev_b32 v6, 5, v0", "v_mul_u32_u24 v6, 2304, v6",
                "v_and_b32 v7, 31, v0", "v_lshl_add_u32 v6, v7, 2, v6", "v_add_u32 v6, s90, v6"])
        cur = CC
        for r in range(16):
            nx = 2 if cur != 2 else 4
            st.add([f"v_fma_f32 v{nx}, v{LAM}, v{cur}, v{RE+r}", f"v_fma_f32 v{nx+1}, v{LAM}, v{cur+1}, v{IM+r}",
                    f"v_fma_f32 v{nx}, -v{LAM+1}, v{cur+1}, v{nx}", f"v_fma_f32 v{nx+1}, v{LAM+1}, v{cur}, v{nx+1}",
                    f"v_mul_f32 v8, v{CO2}, v{nx}", f"v_mul_f32 v9, v{CO2}, v{nx+1}",
                    f"v_fma_f32 v8, -v{CO2+1}, v{nx+1}, v8", f"v_fma_f32 v9, v{CO2+1}, v{nx}, v9",
                    f"v_cvt_pk_bf16_f32 v8, v8, -v9",
                    lambda em_, r=r: em_.lds(f"ds_write_b32 v6, v8 offset:{144*r}")])
            cur = nx
        def rd_ht(em_):
            em_.e("s_waitcnt lgkmcnt(0)"); em_.lg_done = em_.lg
            for s_ in range(4): holder["ht"] = em_.lds(f"ds_read_b128 {rng(XF+4*s_,4)}, v6 offset:{32*s_}")
        st.add([f"v_mul_u32_u24 v6, 144, v{VPI}", "v_lshrrev_b32 v7, 5, v0", "v_lshl_add_u32 v6, v7, 4, v6", "v_add_u32 v6, s90, v6", rd_ht,
                lambda em_: em_.wait_lg(holder["ht"]),
                "s_lshl_b32 s90, s7, 12", "s_add_u32 s90, s90, s68"])
        for s_ in range(4):
            st.add([lambda em_, s_=s_: em_.vmem(f"buffer_store_dwordx4 {rng(XF+4*s_,4)}, v{VLANE16}, s[20:23], s90 offen offset:{1024*s_}{SC}")])
    for it in DMA_SCHED["B0"]: dq.extend(dma_items(it))
    NU = len(units)
    rd_seq = {}; done_bar = set(); slot_of = {}
    NR = 4 if ch == 0 else 6
    slot_ctr = [0]
    def issue_reads(i):
        u = units[i]
        if u["bar"] and u["bar"] not in done_bar:
            barrier(u["bar"]); done_bar.add(u["bar"])
        slot_of[i] = slot_ctr[0] % NR
        if not (NOCOMP or u.get("idle")): slot_ctr[0] += 1
        if NOCOMP or u.get("idle"): rd_seq[i] = -1; slot_of[i] = -1; return
        if u["xr"]: x_read(*u["xr"])
        rd_seq[i] = u["rd"](WR + 4*slot_of[i])
    nxt = 0
    for i in range(NU):
        u = units[i]
        while nxt < NU and nxt <= i + NR - 1:
            issue_reads(nxt); nxt += 1
        if NOCOMP:
            drain_dq(DQ_RATE); continue
        if u.get("idle"):
            drain_dq(DQ_RATE); st.fill(NFI)
            if i + 1 < NU and units[i+1]["p"] != u["p"]: st.signal("p1done")
            continue
        j = i + 1 if (i + 1 < NU and units[i+1]["ks"] == u["ks"] and units[i+1]["p"] == u["p"] and (i+1) in rd_seq) else i
        em.wait_lg(rd_seq[j])
        first = (u["ks"] == 0)
        if first and u["p"] == (1 if ch == 1 else 2): st.flush_until("pre_p1")
        if first and u["p"] == 3 and ch == 1:
            st.flush_until("acc64_free")
            if FUSED and env("P2H", 1):
                import k2h
                for l in k2h.wt_poll_lines("K1_WP1", 32, 33):
                    if l.endswith(":"): em.L.append(l)
                    else: e(l)
                em.vm_done = em.vm
                k2h.wt_setup(em)
        if first and u["p"] == 3 and ch == 0: st.flush_until("sg_free")
        c = "0" if first else rng(u["acc"], 16)
        w = rng(WR + 4*slot_of[i], 4); x = rng(xf(u["ks"]), 4)
        if u["ori"] == "wa": e(f"v_mfma_f32_32x32x16_bf16 {rng(u['acc'],16)}, {w}, {x}, {c}")
        else: e(f"v_mfma_f32_32x32x16_bf16 {rng(u['acc'],16)}, {x}, {w}, {c}")
        last_of_pass = (i + 1 == NU) or units[i+1]["p"] != u["p"]
        if last_of_pass: st.signal(f"p{u['p']}done")
        last_of_step = (i + 1 == NU) or units[i+1]["ks"] != u["ks"] or last_of_pass
        if last_of_step: st.signal(f"p{u['p']}s{u['ks']}")
        if FUSED and env("P2H", 1) and ch == 1 and u["p"] == 3 and last_of_step:
            import k2h
            if u["ks"] >= 1: k2h.wt_load(em, u["ks"] - 1)
            if u["ks"] == 31: k2h.wt_load(em, 31)
        drain_dq(DQ_RATE)
        st.fill(NF[ch])
        if FINE and u["p"] >= 1 and u["ks"] % 8 == 7 and last_of_step: stamp()
    stamp()
    if not NOCOMP: st.flush()
    stamp()
    if DIAG and ch == 1:
        e("s_cmp_lg_u32 s3, 4"); e("s_cbranch_scc1 K1_FIN")
        e("s_lshl_b32 s50, s2, 8"); e(f"s_add_u32 s50, s50, {OFF_TS + 65536}"); e("v_lshlrev_b32 v20, 2, v0"); e("v_add_u32 v20, s50, v20")
        e("global_store_dword v20, v19, s[66:67]")
    e("s_branch K1_FIN")
    return em.text()
```

```python
from common import *
import os
import k1b
from k1b import hstamp, STAG, O_ST, O_DN, SPIN_MAX, rng
NW = 8; KSW = NKS // NW; WP = 128; NP = 16
def wt_setup(em):
    e = em.e
    L = ["s_and_b32 s44, s2, 7", "s_lshr_b32 s45, s2, 3", "s_and_b32 s44, s44, 1", "s_lshl_b32 s44, s44, 2", "s_and_b32 s45, s45, 3", "s_add_u32 s44, s44, s45",
         f"s_add_u32 s12, s66, {OFF_WT}", "s_addc_u32 s13, s67, 0", f"s_mov_b32 s14, {SZ_WT}", "s_mov_b32 s15, 0x00020000",
         f"s_mul_i32 s46, s3, {KSW*1024}", f"s_mul_i32 s44, s44, {2*NKS*1024}", "s_add_u32 s44, s44, s46", f"s_add_u32 s45, s44, {NKS*1024}"]
    for l in L: e(l)
def wt_load(em, j):
    ks, a = j // 2, j % 2
    hi = (ks // 4)*4096; o = (ks % 4)*1024; sb = 44 + a
    if hi: em.e(f"s_add_u32 s46, s{sb}, {hi}"); sb = 46
    return em.vmem(f"buffer_load_dwordx4 {rng(WP+4*j,4)}, v{k1b.VLANE16}, s[12:15], s{sb} offen offset:{o} sc1")
def wt_poll_lines(label, va=2, vd=3):
    return [f"s_and_b32 s94, s2, 7", "s_lshr_b32 s95, s2, 3", "s_and_b32 s94, s94, 1", "s_lshl_b32 s94, s94, 2", "s_and_b32 s95, s95, 3", "s_add_u32 s94, s94, s95",
            "s_lshl_b32 s94, s94, 5", f"v_and_b32 v{va}, 31, v0", f"v_add_u32 v{va}, s94, v{va}", f"v_lshlrev_b32 v{va}, 4, v{va}", f"s_mov_b32 s94, {O_DN + 8}",
            f"{label}:", f"buffer_load_dword v{vd}, v{va}, s[24:27], s94 offen sc1", "s_waitcnt vmcnt(0)", f"v_cmp_ne_u32 vcc, s{STAG}, v{vd}", f"s_cbranch_vccz {label}_OK",
            "s_add_u32 s32, s32, 1", f"s_cmp_lt_u32 s32, {SPIN_MAX}", f"s_cbranch_scc1 {label}", f"{label}_OK:"]
def gen_part2(em):
    DA = int(os.environ.get("K2DA", "5"))
    e = em.e
    def dstamp(n):
        if DIAG: e("s_memtime s[34:35]"); e("s_waitcnt lgkmcnt(0)"); e(f"s_sub_u32 s{n}, s34, s98")
    def lines(L):
        for l in L:
            if l.endswith(":"): em.L.append(l)
            else: e(l)
    e("s_load_dwordx2 s[36:37], s[0:1], %d" % KA['dsk'])
    e(f"s_mov_b32 s74, s{STAG}")
    e("s_cmp_lg_u32 s5, 0"); e("s_cbranch_scc1 P2_CH1")
    lines(wt_poll_lines("P2_WP0")); wt_setup(em)
    e("s_barrier")
    e("s_cmp_eq_u32 s3, 0"); e("s_cbranch_scc1 P2_W0")
    t = Em()
    for j in range(2*NP): wt_load(t, j)
    em.L += t.L
    e("s_branch P2_GOB")
    em.lab("P2_CH1")
    e("s_waitcnt vmcnt(0)")
    e("s_barrier")
    e("s_branch P2_GOB")
    em.lab("P2_W0")
    dstamp(70); hstamp(em, 4)
    e("s_and_b32 s4, s2, 7"); e("s_lshr_b32 s40, s2, 3"); e("s_lshr_b32 s38, s4, 1"); e("s_lshl_b32 s38, s38, 3"); e("s_lshr_b32 s40, s40, 2"); e("s_add_u32 s38, s38, s40")
    e("s_lshl_b32 s40, s6, 4"); e("s_add_u32 s40, s40, s7"); e("s_lshl_b32 s40, s40, 4"); e(f"s_add_u32 s40, s40, {O_DN}")
    e("v_mov_b32 v12, s74"); e("v_mov_b32 v13, s74"); e("v_mov_b32 v14, 0"); e("s_mov_b64 exec, 1")
    e("buffer_store_dwordx2 v[12:13], v14, s[24:27], s40 offen sc0 sc1"); e("s_mov_b64 exec, -1")
    e("s_lshr_b32 s40, s38, 1"); e("s_lshl_b32 s40, s40, 4")
    e("v_and_b32 v12, 15, v0"); e("v_add_u32 v12, s40, v12"); e("v_lshlrev_b32 v12, 4, v12"); e(f"s_mov_b32 s40, {O_DN}")
    em.lab("P2_POLL")
    e("buffer_load_dword v13, v12, s[24:27], s40 offen sc1"); e("s_waitcnt vmcnt(0)"); e("v_cmp_ne_u32 vcc, s74, v13"); e("s_cbranch_vccz P2_GOT")
    e("s_add_u32 s32, s32, 1"); e(f"s_cmp_lt_u32 s32, {SPIN_MAX}"); e("s_cbranch_scc1 P2_POLL")
    em.lab("P2_GOT"); hstamp(em, 5)
    e("s_barrier")
    em.L += t.L
    e("s_branch P2_JOIN")
    em.lab("P2_GOB")
    e("s_barrier")
    em.lab("P2_JOIN")
    dstamp(71)
    e("s_waitcnt lgkmcnt(0)")
    e("s_and_b32 s4, s2, 7"); e("s_lshr_b32 s5, s2, 3"); e("s_lshr_b32 s38, s4, 1"); e("s_and_b32 s39, s4, 1")
    e("s_lshl_b32 s38, s38, 3"); e("s_lshr_b32 s40, s5, 2"); e("s_add_u32 s38, s38, s40")
    e("s_lshl_b32 s39, s39, 2"); e("s_and_b32 s40, s5, 3"); e("s_add_u32 s39, s39, s40")
    srd(em, 28, 36, 37, D*2); srd(em, 16, 62, 63, NROW*D*4)
    e("v_lshlrev_b32 v2, 4, v0")
    e(f"s_mul_i32 s41, s3, {KSW*1024}"); e(f"s_mul_i32 s42, s38, {2*NKS*1024}"); e("s_add_u32 s42, s42, s41"); e(f"s_add_u32 s43, s42, {NKS*1024}")
    em.vm = 2*NP; em.vm_done = 0; em.lg = 0; em.lg_done = 0
    ACC = 64; AR = 16; EP = 56
    assert AR + DA*8 <= EP
    def acc(a,b): return ACC + (2*a+b)*16
    wseq = {ks: 2*ks+1 for ks in range(NP)}; aseq = {}
    def soff(base, ks, tmp):
        hi = (ks // 4)*4096
        if hi == 0: return base, (ks % 4)*1024
        e(f"s_add_u32 s{tmp}, s{base}, {hi}"); return tmp, (ks % 4)*1024
    def issue_w(ks):
        r = WP + (ks % NP)*8
        s0, o = soff(44, ks, 46); em.vmem(f"buffer_load_dwordx4 {rng(r,4)}, v2, s[12:15], s{s0} offen offset:{o} sc1")
        s1, o = soff(45, ks, 47); wseq[ks] = em.vmem(f"buffer_load_dwordx4 {rng(r+4,4)}, v2, s[12:15], s{s1} offen offset:{o} sc1")
    def issue_a(ks):
        r = AR + (ks % DA)*8
        s0, o = soff(42, ks, 46); em.vmem(f"buffer_load_dwordx4 {rng(r,4)}, v2, s[20:23], s{s0} offen offset:{o} sc1")
        s1, o = soff(43, ks, 47); aseq[ks] = em.vmem(f"buffer_load_dwordx4 {rng(r+4,4)}, v2, s[20:23], s{s1} offen offset:{o} sc1")
    for ks in range(min(DA, KSW)): issue_a(ks)
    NREG = 8; NQ4 = 2
    e("v_and_b32 v3, 31, v0"); e("v_lshrrev_b32 v4, 5, v0")
    e("v_bfe_u32 v5, v3, 2, 1"); e("v_lshlrev_b32 v5, 4, v5"); e("v_lshrrev_b32 v6, 3, v3"); e("v_lshl_add_u32 v5, v6, 2, v5"); e("v_and_b32 v6, 3, v3"); e("v_add_u32 v5, v5, v6")
    e("s_lshr_b32 s51, s3, 1"); e("s_and_b32 s46, s51, 1"); e("s_lshr_b32 s47, s51, 1")
    e("s_lshl_b32 s48, s38, 6"); e("s_lshl_b32 s46, s46, 5"); e("s_add_u32 s48, s48, s46"); e("v_add_u32 v5, s48, v5")
    e("s_lshl_b32 s49, s39, 6"); e("s_lshl_b32 s47, s47, 5"); e("s_add_u32 s49, s49, s47"); e("s_and_b32 s52, s3, 1"); e("s_lshl_b32 s52, s52, 4"); e("s_add_u32 s49, s49, s52")
    e("v_lshlrev_b32 v6, 2, v4"); e("v_add_u32 v6, s49, v6")
    e("v_lshlrev_b32 v7, 3, v5"); e("v_lshlrev_b32 v8, 10, v5"); e("v_lshl_add_u32 v8, v6, 1, v8"); e("v_lshlrev_b32 v9, 1, v6")
    e("v_lshlrev_b32 v10, 11, v5"); e("v_lshl_add_u32 v10, v6, 2, v10")
    XS = EP; DS = EP+4; ST = 12; T = 3
    em.vmem(f"buffer_load_dwordx2 {rng(ST,2)}, v7, s[24:27], 0 offen offset:{O_ST} sc1")
    for q in range(NQ4): em.vmem(f"buffer_load_dwordx2 {rng(XS+2*q,2)}, v8, s[8:11], 0 offen offset:{16*q}")
    for q in range(NQ4): sq_ep = em.vmem(f"buffer_load_dwordx2 {rng(DS+2*q,2)}, v9, s[28:31], 0 offen offset:{16*q}")
    rq = [lambda: em.wait_vm(sq_ep), f"v_lshlrev_b32 v14, 16, v{ST}", f"v_and_b32 v15, 0xffff0000, v{ST}", "v_rcp_f32 v15, v15", "s_nop 0"]
    RESR = {}
    for q in range(NQ4):
        for d2 in range(2):
            xr = XS + 2*q + d2; dr = DS + 2*q + d2
            RESR[4*q+2*d2] = xr; RESR[4*q+2*d2+1] = dr
            rq += [f"v_lshlrev_b32 v{T}, 16, v{xr}", f"v_and_b32 v{T+1}, 0xffff0000, v{xr}", f"v_sub_f32 v{T+2}, v{T}, v14", f"v_sub_f32 v{T+3}, v{T+1}, v14",
                f"v_cvt_pk_bf16_f32 v{T+2}, v{T+2}, v{T+3}", f"v_lshlrev_b32 v{T+3}, 16, v{T+2}", f"v_and_b32 v{T+2}, 0xffff0000, v{T+2}",
                f"v_mul_f32 v{T+3}, v{T+3}, v15", f"v_mul_f32 v{T+2}, v{T+2}, v15",
                f"v_cvt_pk_bf16_f32 v{T+2}, v{T+3}, v{T+2}", f"v_lshlrev_b32 v{T+3}, 16, v{T+2}", f"v_and_b32 v{T+2}, 0xffff0000, v{T+2}",
                f"v_lshlrev_b32 v{T+4}, 16, v{dr}", f"v_and_b32 v{T+5}, 0xffff0000, v{dr}", f"v_mul_f32 v{T+3}, v{T+3}, v{T+4}", f"v_mul_f32 v{T+2}, v{T+2}, v{T+5}",
                f"v_cvt_pk_bf16_f32 v{T+2}, v{T+3}, v{T+2}", f"v_lshlrev_b32 v{T+3}, 16, v{T+2}", f"v_and_b32 v{T+2}, 0xffff0000, v{T+2}",
                f"v_add_f32 v{xr}, v{T+3}, v{T}", f"v_add_f32 v{dr}, v{T+2}, v{T+1}"]
    assert T + 5 < 9 or True
    for ks in range(KSW):
        em.wait_vm(max(wseq[ks], aseq[ks]))
        w = WP + (ks % NP)*8; a_ = AR + (ks % DA)*8
        for a in range(2):
            for b in range(2):
                c = "0" if ks == 0 else rng(acc(a,b),16)
                e(f"v_mfma_f32_32x32x16_bf16 {rng(acc(a,b),16)}, {rng(w+4*a,4)}, {rng(a_+4*b,4)}, {c}")
                if ks >= 3:
                    for _ in range(4):
                        if rq:
                            x = rq.pop(0); x() if callable(x) else e(x)
        if ks + NP < KSW: issue_w(ks + NP)
        if ks + DA < KSW: issue_a(ks + DA)
    while rq:
        x = rq.pop(0); x() if callable(x) else e(x)
    dstamp(72); hstamp(em, 6)
    e("s_nop 15")
    e(f"s_mul_i32 s50, s3, {NQ4*1024}"); e("v_add_u32 v11, s50, v2"); e("v_add_u32 v9, 65536, v11")
    for o in range(NW):
        base = ACC + o*NREG
        for r4 in range(NQ4):
            off = o*NW*NQ4*1024 + r4*1024
            em.lds(f"ds_write_b128 v{11 if off < 65536 else 9}, {rng(base+4*r4,4)} offset:{off % 65536}")
    e("s_waitcnt lgkmcnt(0)"); em.lg_done = em.lg
    e("s_barrier")
    e(f"s_mul_i32 s50, s3, {NW*NQ4*1024}"); e("v_add_u32 v11, s50, v2")
    RD = WP
    for w in range(NW):
        for r4 in range(NQ4): em.lds(f"ds_read_b128 {rng(RD+w*NREG+r4*4,4)}, v11 offset:{w*NQ4*1024 + r4*1024}")
    e("s_waitcnt lgkmcnt(0)"); em.lg_done = em.lg
    n = NW
    while n > 1:
        for w in range(n//2):
            for i in range(NREG): e(f"v_add_f32 v{RD+w*NREG+i}, v{RD+w*NREG+i}, v{RD+(w+n//2)*NREG+i}")
        n //= 2
    for i in range(NREG): e(f"v_add_f32 v{RD+i}, v{RD+i}, v{RESR[i]}")
    dstamp(73)
    for q in range(NQ4): em.vmem(f"buffer_store_dwordx4 {rng(RD+4*q,4)}, v10, s[16:19], 0 offen offset:{32*q}")
```

```python
from common import *
import os
env = lambda k, d: int(os.environ.get(k, str(d)))
XB = [0, 24576, 49152]
WB = [73728 + 16384*s for s in range(5)]
MISC = 155648
L_NONCE = MISC; L_SEG = MISC + 64; L_RS = MISC + 64 + 2048; L_CSF = MISC + 64 + 2048 + 512
LDS_TOTAL = 163840
MINI = XB[2]
HOFF = 0
HT_A = 81920
O_ST, O_CS, O_E = 0, SZ_ST, SZ_ST + SZ_CS
O_DN = SZ_ST + SZ_CS + SZ_E
SPIN_MAX = 20000
ROT = env("ROT", 0); NOTAG = 0; HDBG = 0
SC = " sc0 sc1"
LOG2E = "0x3fb8aa3b"; NLOG2E = "0xbfb8aa3b"; INV2PI = "0x3e22f983"
def rng(r, n): return f"v[{r}:{r+n-1}]"
from k1b import Stream
import k1b, k1c
VPI, VRS, VLANE16 = 16, 17, 25
VLRE, VLIM, VLDT = 1, 18, 19
VC1, VI2 = 26, 27
VX0, VX1, VSB, VT2G, VT2U, VT4G, VT4U = 28, 29, 30, 31, 32, 33, 34
VXR = 28; VBR = 32; VT2A, VT2B = 36, 37; VT4 = 38; VT1 = 42
XRING = 44; NXR = 2; WR = 52; NR = 5
ACC0 = 72
WP = 176; NP = 10
STAG = 70
TA, TB = 36, 50
k1b.VLANE16 = VLANE16; k1b.SC = SC
k1c.STAG = STAG; k1c.VLANE16 = VLANE16
slow_paths = k1c.slow_paths
tagged_load = k1c.tagged_load
def ta(kb): return f"s{TA+kb}"
def tb(kb): return f"s{TB+kb}"
SR_X, SR_BRE, SR_W1, SR_BIM, SR_W3 = 8, 12, 16, 84, 88
def dma(em, srdreg, voff, soff, m0_sreg, m0_add, extra=0):
    em.e(f"s_add_u32 m0, s{m0_sreg}, {m0_add}")
    b, a = soff
    if b is None: em.e(f"s_mov_b32 s34, {a}")
    else: em.e(f"s_add_u32 s34, s{b}, {a}")
    if extra: em.e(f"s_add_u32 s34, s34, {extra}")
    return em.vmem(f"buffer_load_dwordx4 v{voff}, s[{srdreg}:{srdreg+3}], s34 offen lds")
def xb_items(em, j, out):
    b = XB[j % 3]
    return [lambda: dma(em, SR_X, VX0, (78, ta(j)), 76, b), lambda: dma(em, SR_X, VX1, (78, ta(j)), 76, b + 1024),
            lambda: dma(em, SR_X, VX0, (78, ta(j)), 76, b + 2048, 16384), lambda: dma(em, SR_X, VX1, (78, ta(j)), 76, b + 3072, 16384),
            lambda: dma(em, SR_BRE, VSB, (None, ta(j)), 75, b + 16384),
            lambda: out.__setitem__(("xb", j), dma(em, SR_BIM, VSB, (None, ta(j)), 75, b + 16384 + 4096))]
def w_items(em, i, out):
    b = WB[i % 5]; ex = (i & 1)*32*3584
    return [lambda: dma(em, SR_W1, VT2G, (83, tb(i >> 1)), 77, b, ex), lambda: dma(em, SR_W3, VT2U, (83, tb(i >> 1)), 77, b + 2048, ex),
            lambda: dma(em, SR_W1, VT4G, (81, tb(i >> 1)), 75, b + 4096, ex),
            lambda: out.__setitem__(("w", i), dma(em, SR_W3, VT4U, (81, tb(i >> 1)), 75, b + 8192, ex))]

def gen_k1(name="k1_kernel"):
    slow_paths.clear()
    top = Em(); e = top.e
    top.L.append(f".globl {name}\n.p2align 8\n.type {name},@function\n{name}:")
    e("s_cmp_ge_u32 s2, 256"); e("s_cbranch_scc1 K1_END")
    if DIAG: e("s_memrealtime s[96:97]"); e("s_memtime s[98:99]")
    e("s_mov_b32 s32, 0")
    e("s_load_dwordx16 s[36:51], s[0:1], 0"); e("s_load_dwordx16 s[52:67], s[0:1], 64")
    e("v_lshrrev_b32 v1, 6, v0"); e("v_and_b32 v0, 63, v0"); e("s_nop 0"); e("v_readfirstlane_b32 s3, v1")
    e("s_and_b32 s72, s2, 7"); e("s_lshr_b32 s73, s2, 3")
    e("s_lshr_b32 s6, s72, 1"); e("s_lshl_b32 s6, s6, 2"); e("s_lshr_b32 s74, s73, 3"); e("s_add_u32 s6, s6, s74")
    e("s_and_b32 s7, s72, 1"); e("s_lshl_b32 s7, s7, 3"); e("s_and_b32 s74, s73, 7"); e("s_add_u32 s7, s7, s74")
    e("s_and_b32 s4, s3, 3"); e("s_lshr_b32 s5, s3, 2")
    e("s_lshl_b32 s75, s4, 10"); e("s_lshl_b32 s76, s4, 12")
    e("s_lshl_b32 s78, s6, 17"); e("s_lshl_b32 s74, s4, 15"); e("s_add_u32 s78, s78, s74")
    e("s_lshr_b32 s74, s7, 2"); e("s_mul_i32 s74, s74, 896"); e("s_and_b32 s83, s7, 3")
    def sel4(dst, vals):
        e(f"s_mov_b32 s{dst}, {vals[0]}")
        for q in (1, 2, 3): e(f"s_cmp_eq_u32 s83, {q}"); e(f"s_cselect_b32 s{dst}, {vals[q]}, s{dst}")
        e(f"s_add_u32 s{dst}, s{dst}, s74")
    sel4(80, (128, 384, 448, 704)); sel4(81, (0, 256, 512, 768)); sel4(82, (192, 192, 640, 640)); sel4(79, (192, 224, 640, 672))
    e("s_lshr_b32 s74, s4, 1"); e("s_mul_i32 s77, s74, 12288"); e("s_and_b32 s33, s4, 1"); e("s_lshl_b32 s33, s33, 10"); e("s_add_u32 s77, s77, s33")
    e("s_cmp_eq_u32 s74, 0"); e("s_cselect_b32 s83, s80, s82")
    e(f"v_lshlrev_b32 v{VLANE16}, 4, v0")
    e("s_waitcnt lgkmcnt(0)")
    srd(top, SR_X, 36, 37, NROW*D*2); srd(top, SR_BRE, 42, 43, P*D*2); srd(top, SR_BIM, 44, 45, P*D*2)
    srd(top, SR_W1, 56, 57, D*F*2); srd(top, SR_W3, 58, 59, D*F*2)
    srd(top, 20, 66, 67, SZ_ACT, OFF_ACT); srd(top, 24, 66, 67, SZ_ST+SZ_CS+SZ_E+SZ_DN, OFF_ST)
    e("s_cmp_lg_u32 s2, 0"); e("s_cbranch_scc1 K1_NONONCE"); e("s_cmp_lg_u32 s3, 0"); e("s_cbranch_scc1 K1_NONONCE")
    e("s_memrealtime s[34:35]"); e("s_waitcnt lgkmcnt(0)"); e("s_or_b32 s34, s34, 1")
    e("v_mov_b32 v6, s34"); e("v_mov_b32 v7, 0"); e("s_mov_b64 exec, 1")
    e("global_store_dword v7, v6, s[64:65] sc0 sc1"); e("s_mov_b64 exec, -1")
    top.lab("K1_NONONCE")
    e("s_lshr_b32 s92, s6, 2"); e("s_and_b32 s93, s6, 3")
    e("s_lshl_b32 s33, s7, 3"); e("s_add_u32 s33, s33, s3"); e("s_lshl_b32 s33, s33, 10"); e("s_lshl_b32 s34, s6, 17"); e("s_add_u32 s33, s33, s34")
    VST = 64
    sq_row = top.vmem(f"buffer_load_dwordx4 {rng(VST,4)}, v{VLANE16}, s[8:11], s33 offen")
    e("s_mov_b32 s28, s38"); e("s_mov_b32 s29, s39"); e(f"s_mov_b32 s30, {P*2}"); e("s_mov_b32 s31, 0x00020000")
    e("v_and_b32 v6, 31, v0"); e("s_lshl_b32 s33, s7, 6"); e("v_lshl_add_u32 v6, v6, 1, s33")
    top.vmem(f"buffer_load_ushort v{VLRE}, v6, s[28:31], 0 offen"); e("s_mov_b32 s28, s40"); e("s_mov_b32 s29, s41")
    top.vmem(f"buffer_load_ushort v{VLIM}, v6, s[28:31], 0 offen"); e("s_mov_b32 s28, s50"); e("s_mov_b32 s29, s51")
    sq_lam = top.vmem(f"buffer_load_ushort v{VLDT}, v6, s[28:31], 0 offen")
    if ROT: e("s_lshr_b32 s33, s73, 3"); e("s_lshl_b32 s33, s33, 1"); e("s_add_u32 s33, s33, s73")
    else: e("s_mov_b32 s33, 0")
    for kb in range(8):
        e(f"s_add_u32 s34, s33, {kb}"); e("s_and_b32 s34, s34, 7"); e(f"s_lshl_b32 s{TA+kb}, s34, 7"); e(f"s_mul_i32 s{TB+kb}, s34, {64*3584}")
    e(f"v_and_b32 v2, 31, v0"); e("v_bfe_u32 v4, v2, 2, 1"); e("v_lshlrev_b32 v4, 4, v4")
    e("v_lshrrev_b32 v5, 3, v2"); e("v_lshl_add_u32 v4, v5, 2, v4"); e("v_and_b32 v5, 3, v2"); e(f"v_add_u32 v{VPI}, v4, v5")
    e("s_cmp_lg_u32 s5, 0"); e("s_cbranch_scc1 K1_LOAD")
    from k1d_roles import gen_consumer, gen_loader, stats_code
    texts = [top.text(), gen_consumer(top, sq_row, sq_lam, VST), gen_loader(top, sq_row, VST)]
    tail = Em(); tail.lab("K1_FIN")
    import k2g
    k2g.k1c = __import__("k1d"); k2g.WP = WP; k2g.NP = NP; k2g.STAG = STAG; k2g.O_ST = O_ST; k2g.O_DN = O_DN; k2g.hstamp = lambda em, i: None
    k2g.gen_part2(tail)
    e = tail.e
    if DIAG:
        e("s_waitcnt vmcnt(0)")
        e("s_memrealtime s[86:87]"); e("s_memtime s[88:89]"); e("s_waitcnt lgkmcnt(0)")
        e("s_cmp_lg_u32 s3, 0"); e("s_cbranch_scc1 K1_END")
        e("v_mov_b32 v20, s96"); e("v_mov_b32 v21, s86"); e("s_sub_u32 s88, s88, s98"); e("v_mov_b32 v22, s88"); e("v_mov_b32 v23, 0")
        e("v_mov_b32 v28, s70"); e("v_mov_b32 v29, s71"); e("v_mov_b32 v30, s72"); e("v_mov_b32 v31, s73")
        e("s_lshl_b32 s50, s2, 5"); e(f"s_add_u32 s50, s50, {OFF_TS}"); e("v_mov_b32 v24, s50")
        e("s_mov_b64 exec, 1"); e("global_store_dwordx4 v24, v[20:23], s[66:67]"); e("global_store_dwordx4 v24, v[28:31], s[66:67] offset:16")
    tail.lab("K1_END"); tail.e("s_endpgm")
    return "".join(texts) + tail.text() + "\n".join(slow_paths) + "\n", kd(name, 256), LDS_TOTAL
```

```python
import k1d
from k1d import *
G, KR = 92, 93
def tagged(em, pre, insts, tagregs, label, tp=100):
    for p in pre: em.e(p)
    seqs = [em.vmem(i) for i in insts]
    def cmp_code():
        out = []
        for n, t in enumerate(tagregs):
            dst = "vcc" if n == 0 else f"s[{tp}:{tp+1}]"
            out.append(f"v_cmp_ne_u32 {dst}, s{STAG}, v{t}")
            if n: out.append(f"s_or_b64 vcc, vcc, s[{tp}:{tp+1}]")
        return out
    def check(em2):
        em2.wait_vm(seqs[-1])
        for i in cmp_code(): em2.e(i)
        em2.e(f"s_cbranch_vccnz {label}_SLOW"); em2.lab(f"{label}_OK")
        sp = [f"{label}_SLOW:", "    s_sleep 1"] + ["    " + i for i in pre] + ["    " + i for i in insts] + ["    s_waitcnt vmcnt(0)"]
        sp += ["    " + i for i in cmp_code()]
        sp += [f"    s_cbranch_vccz {label}_OK", "    s_add_u32 s32, s32, 1", f"    s_cmp_lt_u32 s32, {SPIN_MAX}", f"    s_cbranch_scc1 {label}_SLOW", f"    s_branch {label}_OK"]
        slow_paths.append("\n".join(sp))
    return check
def stats_code(em, VST):
    e = em.e
    e("s_mov_b32 s33, 0x3f803f80"); e("v_mov_b32 v2, 0"); e("v_mov_b32 v3, 0")
    for i in range(4): e(f"v_dot2_f32_bf16 v2, v{VST+i}, s33, v2"); e(f"v_dot2_f32_bf16 v3, v{VST+i}, v{VST+i}, v3")
    e("s_nop 2")
    for dpp in ("row_shr:1", "row_shr:2", "row_shr:4", "row_shr:8", "row_bcast:15 row_mask:0xa", "row_bcast:31 row_mask:0xc"):
        rm = "" if "row_mask" in dpp else " row_mask:0xf"
        e(f"v_add_f32_dpp v2, v2, v2 {dpp}{rm} bank_mask:0xf"); e(f"v_add_f32_dpp v3, v3, v3 {dpp}{rm} bank_mask:0xf"); e("s_nop 1")
    e("v_mul_f32 v2, 0x3b000000, v2"); e("v_mul_f32 v3, 0x3b000000, v3"); e("v_fma_f32 v3, -v2, v2, v3"); e("v_max_f32 v3, 0, v3")
    e("v_cvt_pk_bf16_f32 v4, v2, v3"); e("v_and_b32 v5, 0xffff0000, v4"); e("v_add_f32 v5, 0x3727c5ac, v5")
    e("v_cvt_pk_bf16_f32 v5, v5, v5"); e("v_lshlrev_b32 v5, 16, v5"); e("v_sqrt_f32 v5, v5"); e("s_nop 0"); e("v_cvt_pk_bf16_f32 v8, v2, v5")
def after_b0(em):
    e = em.e
    e(f"v_mov_b32 v7, {L_NONCE}"); e("ds_read_b32 v6, v7"); e("s_waitcnt lgkmcnt(0)"); e(f"v_readfirstlane_b32 s{STAG}, v6")
    e("s_lshl_b32 s33, s6, 7"); e("s_lshl_b32 s34, s7, 3"); e("s_add_u32 s33, s33, s34"); e("s_add_u32 s33, s33, s3"); e("s_lshl_b32 s33, s33, 3")
    e(f"v_mov_b32 v9, s{STAG}"); e("v_mov_b32 v7, 0"); e("s_mov_b32 exec_lo, 0"); e("s_brev_b32 exec_hi, 1")
    em.vmem(f"buffer_store_dwordx2 v[8:9], v7, s[24:27], s33 offen offset:{O_ST} sc0 sc1")
    e("s_mov_b64 exec, -1")
def common_scalars(em):
    e = em.e
    e("s_lshl_b32 s68, s6, 2"); e("s_add_u32 s68, s68, s4"); e(f"s_mul_i32 s68, s68, {NKS*1024}")
    e("s_lshl_b32 s71, s6, 7"); e("s_lshl_b32 s33, s4, 5"); e("s_add_u32 s71, s71, s33"); e("s_lshl_b32 s71, s71, 3")
def stats_gather(em, holder, dst, C):
    holder["st"] = tagged(em, [f"v_lshlrev_b32 v{dst}, 3, v{VPI}"], [f"buffer_load_dwordx2 {rng(dst,2)}, v{dst}, s[24:27], s71 offen offset:{O_ST} sc1"], [dst+1], f"K1{C}_ST")
def proc_stats(holder, src, XM):
    return [lambda em_: holder["st"](em_), f"v_and_b32 v{VRS}, 0xffff0000, v{src}", f"v_mul_f32 v{VI2}, v{VRS}, v{VRS}", f"v_rcp_f32 v{VRS}, v{VRS}",
            f"v_and_b32 v{XM+1}, 0xffff, v{src}", f"v_xor_b32 v{XM+1}, 0x8000, v{XM+1}", f"v_cmp_gt_u32 vcc, 32, v0",
            f"v_lshl_or_b32 v{XM}, v{XM+1}, 16, v{XM+1}", f"v_mul_f32 v{VC1}, {NLOG2E}, v{VRS}",
            f"v_cndmask_b32 v{XM}, 0, v{XM}, vcc", f"v_cndmask_b32 v{XM+1}, 0, v{XM+1}, vcc", f"v_mov_b32 v{XM+2}, 0", f"v_mov_b32 v{XM+3}, 0"]
def ffn_epi(acc, sreg, jadd, OUT=2, T=6, tmp=33):
    seq = []
    for i in range(4):
        g0, g1, u0, u1 = acc+2*i, acc+2*i+1, acc+8+2*i, acc+8+2*i+1
        seq += [f"v_mul_f32 v{T}, v{g0}, v{VC1}", f"v_mul_f32 v{T+1}, v{g1}, v{VC1}", f"v_exp_f32 v{T}, v{T}", f"v_exp_f32 v{T+1}, v{T+1}",
                f"v_mul_f32 v{T+2}, v{g0}, v{u0}", f"v_mul_f32 v{T+3}, v{g1}, v{u1}",
                f"v_fma_f32 v{T}, v{T}, v{VI2}, v{VI2}", f"v_fma_f32 v{T+1}, v{T+1}, v{VI2}, v{VI2}",
                f"v_rcp_f32 v{T}, v{T}", f"v_rcp_f32 v{T+1}, v{T+1}", (f"s_lshl_b32 s{tmp}, s{sreg}, 5" if i == 3 else "s_nop 0"),
                f"v_mul_f32 v{T+2}, v{T+2}, v{T}", f"v_mul_f32 v{T+3}, v{T+3}, v{T+1}", f"v_cvt_pk_bf16_f32 v{OUT+i}, v{T+2}, v{T+3}"]
    seq += [f"s_add_u32 s{tmp}, s{tmp}, s68", f"s_add_u32 s{tmp}, s{tmp}, {(64+jadd)*1024}",
            lambda em_: em_.vmem(f"buffer_store_dwordx4 {rng(OUT,4)}, v{VLANE16}, s[20:23], s{tmp} offen{SC}"), "s_nop 0"]
    return seq
def emit(em, seq):
    for x in seq:
        for y in (x if isinstance(x, list) else [x]):
            y(em) if callable(y) else em.e(y)
def wt_poll_prefetch(em, C):
    e = em.e
    for l in ["s_and_b32 s33, s2, 7", "s_lshr_b32 s34, s2, 3", "s_and_b32 s33, s33, 1", "s_lshl_b32 s33, s33, 2", "s_and_b32 s34, s34, 3", "s_add_u32 s33, s33, s34",
              "s_lshl_b32 s33, s33, 5", "v_and_b32 v70, 31, v0", "v_add_u32 v70, s33, v70", "v_lshlrev_b32 v70, 4, v70", f"s_mov_b32 s33, {O_DN + 8}"]: e(l)
    em.lab(f"K1{C}_WTP")
    e("buffer_load_dword v71, v70, s[24:27], s33 offen sc1"); e("s_waitcnt vmcnt(0)"); e(f"v_cmp_ne_u32 vcc, s{STAG}, v71"); e(f"s_cbranch_vccz K1{C}_WTPOK")
    e("s_add_u32 s32, s32, 1"); e(f"s_cmp_lt_u32 s32, {SPIN_MAX}"); e(f"s_cbranch_scc1 K1{C}_WTP")
    em.lab(f"K1{C}_WTPOK"); em.vm_done = em.vm
    import k2g
    k2g.k1c = k1d; k2g.WP = WP; k2g.NP = NP
    k2g.wt_prefetch(em)
ACC = {t: ACC0 + 16*t for t in range(9)}
HAND = [2, 3, 5, 6, 7]
KEEP = [4, 8]
FFN_ST = {2: (80, 0), 3: (80, 1), 4: (81, 0), 5: (81, 1), 6: (81, 2), 7: (81, 3), 8: (79, 0)}

def gen_consumer(top, sq_row, sq_lam, VST):
    em = Em(); em.vm = top.vm; em.vm_done = 0; e = em.e; C = "C"
    st = Stream(em); holder = {}
    e("v_lshrrev_b32 v3, 5, v0")
    e(f"v_bfe_u32 v5, v{VPI}, 1, 3"); e("v_xor_b32 v5, v3, v5"); e(f"v_lshlrev_b32 v6, 7, v{VPI}"); e("v_lshl_add_u32 v6, v5, 4, v6"); e("v_add_u32 v6, s76, v6")
    for s4 in range(4): e(f"v_xor_b32 v{VXR+s4}, {32*s4}, v6")
    e("v_and_b32 v2, 31, v0"); e("v_bfe_u32 v5, v2, 1, 3"); e("v_xor_b32 v5, v3, v5"); e("v_lshlrev_b32 v6, 7, v2"); e("v_lshl_add_u32 v6, v5, 4, v6"); e("v_add_u32 v6, 16384, v6")
    for s4 in range(4): e(f"v_xor_b32 v{VBR+s4}, {32*s4}, v6")
    e("v_bfe_u32 v2, v0, 4, 1"); e("v_bfe_u32 v4, v0, 2, 2"); e("v_and_b32 v5, 3, v0"); e("v_lshl_add_u32 v6, v3, 3, v4")
    e("v_lshlrev_b32 v7, 6, v6"); e("v_lshl_add_u32 v7, v5, 3, v7"); e("v_lshl_add_u32 v7, v2, 11, v7"); e(f"v_lshl_add_u32 v{VT2A}, v2, 5, v7"); e(f"v_xor_b32 v{VT2B}, 32, v{VT2A}")
    e("v_lshlrev_b32 v8, 7, v6"); e("v_lshl_add_u32 v8, v5, 3, v8"); e("v_lshl_add_u32 v8, v2, 12, v8")
    e("v_bfe_u32 v9, v4, 1, 1"); e("v_lshl_or_b32 v9, v2, 1, v9"); e("v_lshl_add_u32 v8, v9, 5, v8"); e("v_add_u32 v8, 4096, v8")
    for j in range(4): e(f"v_xor_b32 v{VT4+j}, {32*j}, v8")
    e("s_and_b32 s33, s7, 1"); e("s_lshl_b32 s33, s33, 5"); e(f"v_xor_b32 v{VT1}, s33, v{VT2A}"); e(f"v_add_u32 v{VT1}, 12288, v{VT1}")
    common_scalars(em)
    LAM, L16, L128, CO2, CC, PWA, PWB = 216, 218, 220, 222, 224, 226, 227
    def csq(dst, src, t):
        return [f"v_mul_f32 v{t}, v{src}, v{src}", f"v_mul_f32 v{t+1}, v{src}, v{src+1}", f"v_fma_f32 v{dst}, -v{src+1}, v{src+1}, v{t}", f"v_add_f32 v{dst+1}, v{t+1}, v{t+1}"]
    em.wait_vm(sq_row); stats_code(em, VST); e("v_mov_b32 v232, v8")
    lam = [lambda em_: em_.wait_vm(sq_lam),
           f"v_lshlrev_b32 v2, 16, v{VLRE}", f"v_lshlrev_b32 v3, 16, v{VLIM}", f"v_lshlrev_b32 v4, 16, v{VLDT}",
           f"v_mul_f32 v4, {LOG2E}, v4", "v_exp_f32 v4, v4", "s_nop 0", "v_cvt_pk_bf16_f32 v4, v4, v4", "v_lshlrev_b32 v4, 16, v4",
           "v_mul_f32 v5, v4, v2", "v_mul_f32 v6, v4, v3", f"v_mul_f32 v5, {LOG2E}, v5", f"v_mul_f32 v6, {INV2PI}, v6",
           "v_exp_f32 v5, v5", "v_fract_f32 v6, v6", "s_nop 0", "v_cos_f32 v7, v6", "v_sin_f32 v8, v6", "s_nop 0",
           f"v_mul_f32 v{LAM}, v5, v7", f"v_mul_f32 v{LAM+1}, v5, v8", f"v_subrev_f32 v7, 1.0, v{LAM}",
           "v_mul_f32 v9, v2, v2", "v_fma_f32 v9, v3, v3, v9", "v_rcp_f32 v9, v9",
           "v_mul_f32 v10, v7, v2", f"v_fma_f32 v10, v{LAM+1}, v3, v10", f"v_mul_f32 v11, v{LAM+1}, v2", "v_fma_f32 v11, -v7, v3, v11",
           "v_add_f32 v9, v9, v9", f"v_mul_f32 v{CO2}, v10, v9", f"v_mul_f32 v{CO2+1}, v11, v9"]
    lam += csq(L16, LAM, 2) + csq(L16, L16, 2) + csq(L16, L16, 2) + csq(L16, L16, 2) + csq(L128, L16, 2) + csq(L128, L128, 2) + csq(L128, L128, 2)
    lam += csq(2, L16, 4) + csq(6, 2, 4)
    lam += [f"v_mul_f32 v8, v2, v6", f"v_mul_f32 v9, v2, v7", f"v_fma_f32 v8, -v3, v7, v8", f"v_fma_f32 v9, v3, v6, v9",
            f"s_cmp_eq_u32 s4, 1", "s_cselect_b64 s[34:35], -1, 0", "v_mov_b32 v10, 1.0", "v_mov_b32 v11, 0",
            "v_cndmask_b32 v10, v10, v2, s[34:35]", "v_cndmask_b32 v11, v11, v3, s[34:35]",
            f"s_cmp_eq_u32 s4, 2", "s_cselect_b64 s[34:35], -1, 0", "v_cndmask_b32 v10, v10, v6, s[34:35]", "v_cndmask_b32 v11, v11, v7, s[34:35]",
            f"s_cmp_eq_u32 s4, 3", "s_cselect_b64 s[34:35], -1, 0", "v_cndmask_b32 v10, v10, v8, s[34:35]", "v_cndmask_b32 v11, v11, v9, s[34:35]",
            f"v_mul_f32 v2, v{L16}, v10", f"v_mul_f32 v3, v{L16}, v11", f"v_fma_f32 v2, -v{L16+1}, v11, v2", f"v_fma_f32 v3, v{L16+1}, v10, v3",
            "v_cmp_lt_u32 vcc, 31, v0", "s_nop 1", f"v_cndmask_b32 v{PWA}, v10, v2, vcc", f"v_cndmask_b32 v{PWB}, v11, v3, vcc"]
    emit(em, lam)
    e("v_mov_b32 v8, v232")
    e("s_barrier")
    after_b0(em)
    base_now = {}
    def set_base(regs, key, base):
        hi = base & ~0x7fff; cur = base_now.get(key, 0)
        if hi != cur:
            for r in regs:
                d = hi - cur
                e(f"v_add_u32 v{r}, {d}, v{r}" if d > 0 else f"v_subrev_u32 v{r}, {-d}, v{r}")
            base_now[key] = hi
        return base - hi
    xregs = list(range(VXR, VXR+8)); wregs = list(range(VT2A, VT1+1))
    def xreg(ks): return XRING + 4*(ks % NXR)
    def rd_tile(t, dst, ks):
        if t < 2:
            imm = set_base(xregs, "x", XB[(ks >> 2) % 3])
            return em.lds(f"ds_read_b128 {rng(dst,4)}, v{VBR + (ks & 3)} offset:{imm + 4096*t}")
        imm = set_base(wregs, "w", WB[(ks >> 1) % 5])
        if t in (2, 3): preg, step, h2 = VT2A + (t - 2), 1024, 256
        elif t == 8: preg, step, h2 = VT1, 1024, 256
        else: preg, step, h2 = VT4 + (t - 4), 2048, 512
        em.lds(f"ds_read_b64_tr_b16 {rng(dst,2)}, v{preg} offset:{imm + (ks & 1)*step}")
        return em.lds(f"ds_read_b64_tr_b16 {rng(dst+2,2)}, v{preg} offset:{imm + (ks & 1)*step + h2}")
    units = [dict(ks=ks, t=t, first=(t == 0)) for ks in range(32) for t in range(9)]
    stamp_n = [0]
    def stamp():
        if DIAG:
            e("s_memtime s[34:35]"); e("s_waitcnt lgkmcnt(0)"); em.lg_done = em.lg
            e("s_sub_u32 s34, s34, s98"); e(f"v_writelane_b32 v19, s34, {stamp_n[0]}"); stamp_n[0] += 1
    stamp()
    XM = 12
    rd_seq = {}
    def issue_reads(i):
        u = units[i]
        if u["first"]:
            ks = u["ks"]
            if ks % 2 == 0 and ks > 0:
                e("s_waitcnt lgkmcnt(0)"); em.lg_done = em.lg
                if (ks // 2) % 2 == 0: stamp()
                e("s_barrier")
                if ks // 2 == 8: stats_gather(em, holder, 232, C)
            imm = set_base(xregs, "x", XB[(ks >> 2) % 3])
            em.lds(f"ds_read_b128 {rng(xreg(ks),4)}, v{VXR + (ks & 3)} offset:{imm}")
        rd_seq[i] = rd_tile(u["t"], WR + 4*(i % NR), u["ks"])
    NU = len(units); nxt = 0
    for i in range(NU):
        u = units[i]
        while nxt < NU and nxt <= i + NR - 1:
            un = units[nxt]
            if un["first"] and un["ks"] - NXR >= u["ks"]: break
            issue_reads(nxt); nxt += 1
        em.wait_lg(rd_seq[i])
        acc = ACC[u["t"]]; c = "0" if u["ks"] == 0 else rng(acc, 16)
        w = rng(WR + 4*(i % NR), 4); x = rng(xreg(u["ks"]), 4)
        if u["t"] >= 2: e(f"v_mfma_f32_32x32x16_bf16 {rng(acc,16)}, {w}, {x}, {c}")
        else: e(f"v_mfma_f32_32x32x16_bf16 {rng(acc,16)}, {x}, {w}, {c}")
        if u["ks"] == 26 and u["t"] == 8:
            emit(em, proc_stats(holder, 232, XM))
            emit(em, [f"s_lshl_b32 s86, s4, 7", f"s_add_u32 s86, s86, {L_RS}", f"v_lshlrev_b32 v2, 2, v{VPI}", f"v_add_u32 v2, s86, v2", lambda em_: em_.lds(f"ds_write_b32 v2, v{VRS}")])
    stamp()
    e("s_waitcnt lgkmcnt(0)"); em.lg_done = em.lg
    e("s_barrier")
    e(f"s_mul_i32 s33, s4, {5*4096}"); e(f"v_add_u32 v2, s33, v{VLANE16}"); e("s_nop 7")
    own = [0, 1, 4, 8]
    e("v_lshlrev_b32 v3, 3, v0"); e(f"v_add_u32 v3, {L_CSF}, v3")
    for n, t in enumerate(own):
        em.lds(f"ds_read_b64 {rng(WR+4*n,2)}, v3 offset:{512*t}"); e(f"v_mov_b32 v{WR+4*n+2}, 0"); e(f"v_mov_b32 v{WR+4*n+3}, 0")
    for n, t in enumerate(HAND):
        for r4 in range(4): em.lds(f"ds_write_b128 v2, {rng(ACC[t]+4*r4,4)} offset:{n*4096 + r4*1024}")
    e("s_waitcnt lgkmcnt(0)"); em.lg_done = em.lg
    e("s_barrier")
    for n, t in enumerate(own):
        fr = rng(WR+4*n, 4)
        if t >= 2: e(f"v_mfma_f32_32x32x16_bf16 {rng(ACC[t],16)}, {fr}, {rng(XM,4)}, {rng(ACC[t],16)}")
        else: e(f"v_mfma_f32_32x32x16_bf16 {rng(ACC[t],16)}, {rng(XM,4)}, {fr}, {rng(ACC[t],16)}")
    RE, IM = ACC[0], ACC[1]
    RS = ACC[2]
    seqs = ["v_lshrrev_b32 v3, 5, v0", "v_lshlrev_b32 v3, 6, v3", f"v_add_u32 v3, s86, v3"]
    for q in range(4): seqs.append(lambda em_, q=q: holder.__setitem__(("rs", q), em_.lds(f"ds_read_b128 {rng(RS+4*q,4)}, v3 offset:{16*q}")))
    seqs += [lambda em_: em_.wait_lg(holder[("rs", 3)]), "s_nop 7"]
    for r in range(16): seqs += [f"v_mul_f32 v{RE+r}, v{RE+r}, v{RS+r}", f"v_mul_f32 v{IM+r}, v{IM+r}, v{RS+r}"]
    seqs += [f"v_fma_f32 v2, v{LAM}, v{RE}, v{RE+1}", f"v_fma_f32 v3, v{LAM}, v{IM}, v{IM+1}", f"v_fma_f32 v2, -v{LAM+1}, v{IM}, v2", f"v_fma_f32 v3, v{LAM+1}, v{RE}, v3"]
    cur = 2
    for r in range(2, 16):
        nx = 6 - cur
        seqs += [f"v_fma_f32 v{nx}, v{LAM}, v{cur}, v{RE+r}", f"v_fma_f32 v{nx+1}, v{LAM}, v{cur+1}, v{IM+r}",
                 f"v_fma_f32 v{nx}, -v{LAM+1}, v{cur+1}, v{nx}", f"v_fma_f32 v{nx+1}, v{LAM+1}, v{cur}, v{nx+1}"]
        cur = nx
    seqs += [f"s_lshl_b32 s33, s4, 9", f"s_add_u32 s33, s33, {L_SEG}", "v_lshlrev_b32 v6, 3, v0", "v_add_u32 v6, s33, v6",
             lambda em_, cur=cur: em_.lds(f"ds_write_b64 v6, {rng(cur,2)}"), "s_waitcnt lgkmcnt(0)"]
    emit(em, seqs); em.lg_done = em.lg
    e("s_barrier")
    SG = ACC[3]
    blk = [f"v_mov_b32 v{CC}, 0", f"v_mov_b32 v{CC+1}, 0"]
    for s_ in range(6):
        if s_ % 2 == 0: blk += [f"s_cmp_le_u32 s4, {s_//2}", f"s_cbranch_scc1 K1{C}_SGD"]
        blk += [f"v_fma_f32 v2, v{L16}, v{CC}, v{SG+2*s_}", f"v_fma_f32 v3, v{L16}, v{CC+1}, v{SG+1+2*s_}",
                f"v_fma_f32 v2, -v{L16+1}, v{CC+1}, v2", f"v_fma_f32 v{CC+1}, v{L16+1}, v{CC}, v3", f"v_mov_b32 v{CC}, v2"]
    blk.append(lambda em_: em_.lab(f"K1{C}_SGD"))
    def rd_seg(em_):
        for s_ in range(6): em_.lds(f"ds_read_b64 {rng(SG+2*s_,2)}, v6 offset:{256*s_}")
    emit(em, ["v_and_b32 v6, 31, v0", "v_lshlrev_b32 v6, 3, v6", f"v_add_u32 v6, {L_SEG}, v6", rd_seg, "s_lshl_b32 s33, s4, 9", "v_add_u32 v7, s33, v6",
          lambda em_: em_.lds(f"ds_read_b64 v[8:9], v7"), lambda em_: holder.__setitem__("e2", em_.lds(f"ds_read_b64 v[10:11], v7 offset:256")),
          lambda em_: em_.wait_lg(holder["e2"]), blk,
          f"v_fma_f32 v2, v{L16}, v{CC}, v8", f"v_fma_f32 v3, v{L16}, v{CC+1}, v9", f"v_fma_f32 v2, -v{L16+1}, v{CC+1}, v2", f"v_fma_f32 v3, v{L16+1}, v{CC}, v3",
          f"v_fma_f32 v4, v{L16}, v2, v10", f"v_fma_f32 v6, v{L16}, v3, v11", f"v_fma_f32 v4, -v{L16+1}, v3, v4", f"v_fma_f32 v6, v{L16+1}, v2, v6",
          "v_cmp_lt_u32 vcc, 31, v0", f"v_mov_b32 v5, s{STAG}", f"v_mov_b32 v7, s{STAG}",
          f"v_cndmask_b32 v{CC}, v{CC}, v2, vcc", f"v_cndmask_b32 v{CC+1}, v{CC+1}, v3, vcc",
          "s_lshl_b32 s33, s7, 4", "s_add_u32 s33, s33, s6", "s_lshl_b32 s33, s33, 9", f"s_add_u32 s33, s33, {O_E}",
          "s_cmp_eq_u32 s4, 3", "s_cselect_b32 exec_lo, -1, 0", "s_mov_b32 exec_hi, 0", f"s_cbranch_execz K1{C}_NOPUB",
          f"buffer_store_dwordx4 v[4:7], v{VLANE16}, s[24:27], s33 offen sc0 sc1", lambda em_: em_.lab(f"K1{C}_NOPUB"), "s_mov_b64 exec, -1", "s_nop 1"])
    for t in KEEP: emit(em, ffn_epi(ACC[t], *FFN_ST[t]))
    EG = ACC[5]; HH = 228
    epre = ["s_lshl_b32 s33, s7, 13", f"s_add_u32 s33, s33, {O_E}", "s_add_u32 s34, s33, 4096", "v_and_b32 v2, 31, v0", "v_lshlrev_b32 v2, 4, v2"]
    eld = [f"buffer_load_dwordx4 {rng(EG+4*j,4)}, v2, s[24:27], s{33 + (j//8)} offen offset:{512*(j%8)} sc1" for j in range(16)]
    emit(em, epre)
    for l in eld: em.vmem(l)
    def tagchk(sfx):
        L = ["    v_mov_b32 v3, 0"]
        for j in range(15):
            L += [f"    s_cmp_le_u32 s6, {j}", f"    s_cbranch_scc1 K1{C}_TCD{sfx}", f"    v_xor_b32 v4, s{STAG}, v{EG+4*j+1}", f"    v_xor_b32 v5, s{STAG}, v{EG+4*j+3}", "    v_or3_b32 v3, v3, v4, v5"]
        return L + [f"K1{C}_TCD{sfx}:", "    v_cmp_ne_u32 vcc, 0, v3"]
    e("s_waitcnt vmcnt(0)"); em.vm_done = em.vm
    em.L += tagchk("F"); e(f"s_cbranch_vccnz K1{C}_E_SLOW"); em.lab(f"K1{C}_E_OK")
    slow_paths.append("\n".join([f"K1{C}_E_SLOW:", "    s_sleep 1"] + ["    " + x for x in epre + eld] + ["    s_waitcnt vmcnt(0)"] + tagchk("S") +
        [f"    s_cbranch_vccz K1{C}_E_OK", "    s_add_u32 s32, s32, 1", f"    s_cmp_lt_u32 s32, {SPIN_MAX}", f"    s_cbranch_scc1 K1{C}_E_SLOW", f"    s_branch K1{C}_E_OK"]))
    e(f"v_mov_b32 v{HH}, 0"); e(f"v_mov_b32 v{HH+1}, 0")
    for j in range(15):
        R = EG + 4*j
        emit(em, [f"s_cmp_le_u32 s6, {j}", f"s_cbranch_scc1 K1{C}_HD", f"v_fma_f32 v2, v{L128}, v{HH}, v{R}", f"v_fma_f32 v3, v{L128}, v{HH+1}, v{R+2}",
              f"v_fma_f32 v2, -v{L128+1}, v{HH+1}, v2", f"v_fma_f32 v{HH+1}, v{L128+1}, v{HH}, v3", f"v_mov_b32 v{HH}, v2"])
    em.lab(f"K1{C}_HD")
    emit(em, [f"v_fma_f32 v{CC}, v{PWA}, v{HH}, v{CC}", f"v_fma_f32 v{CC+1}, v{PWA}, v{HH+1}, v{CC+1}",
          f"v_fma_f32 v{CC}, -v{PWB}, v{HH+1}, v{CC}", f"v_fma_f32 v{CC+1}, v{PWB}, v{HH}, v{CC+1}",
          f"s_mul_i32 s33, s4, 4608", f"s_add_u32 s33, s33, {HT_A}", "v_lshrrev_b32 v6, 5, v0", "v_mul_u32_u24 v6, 2304, v6",
          "v_and_b32 v7, 31, v0", "v_lshl_add_u32 v6, v7, 2, v6", "v_add_u32 v6, s33, v6"])
    cur = CC
    for r in range(16):
        nx = 2 if cur != 2 else 4
        emit(em, [f"v_fma_f32 v{nx}, v{LAM}, v{cur}, v{RE+r}", f"v_fma_f32 v{nx+1}, v{LAM}, v{cur+1}, v{IM+r}",
              f"v_fma_f32 v{nx}, -v{LAM+1}, v{cur+1}, v{nx}", f"v_fma_f32 v{nx+1}, v{LAM+1}, v{cur}, v{nx+1}",
              f"v_mul_f32 v8, v{CO2}, v{nx}", f"v_mul_f32 v9, v{CO2}, v{nx+1}", f"v_fma_f32 v8, -v{CO2+1}, v{nx+1}, v8", f"v_fma_f32 v9, v{CO2+1}, v{nx}, v9",
              f"v_cvt_pk_bf16_f32 v8, v8, -v9", lambda em_, r=r: em_.lds(f"ds_write_b32 v6, v8 offset:{144*r}")])
        cur = nx
    emit(em, [f"v_mul_u32_u24 v6, 144, v{VPI}", "v_lshrrev_b32 v7, 5, v0", "v_lshl_add_u32 v6, v7, 4, v6", "v_add_u32 v6, s33, v6", "s_waitcnt lgkmcnt(0)"])
    em.lg_done = em.lg
    for s_ in range(4): holder["ht"] = em.lds(f"ds_read_b128 {rng(WR+4*s_,4)}, v6 offset:{32*s_}")
    em.wait_lg(holder["ht"])
    emit(em, ["s_lshl_b32 s33, s7, 12", "s_add_u32 s33, s33, s68"])
    for s_ in range(4): em.vmem(f"buffer_store_dwordx4 {rng(WR+4*s_,4)}, v{VLANE16}, s[20:23], s33 offen offset:{1024*s_}{SC}")
    stamp()
    if DIAG:
        e("s_cmp_lg_u32 s3, 0"); e("s_cbranch_scc1 K1C_NOST")
        e("s_lshl_b32 s34, s2, 8"); e(f"s_add_u32 s34, s34, {OFF_TS + 65536}"); e("v_lshlrev_b32 v20, 2, v0"); e("v_add_u32 v20, s34, v20")
        e("global_store_dword v20, v19, s[66:67]"); em.vm += 1
        em.lab("K1C_NOST")
    wt_poll_prefetch(em, C)
    e("s_branch K1_FIN")
    return em.text()

def gen_loader(top, sq_row, VST):
    em = Em(); em.vm = top.vm; em.vm_done = 0; e = em.e; C = "L"
    em.lab("K1_LOAD")
    holder = {}; sq = {}
    e("v_lshrrev_b32 v2, 3, v0"); e("v_and_b32 v3, 7, v0"); e("v_lshrrev_b32 v4, 1, v2"); e("v_xor_b32 v5, v3, v4")
    e("v_lshlrev_b32 v6, 10, v2"); e(f"v_lshl_add_u32 v{VX0}, v5, 4, v6")
    e("v_xor_b32 v7, 4, v5"); e("v_lshl_add_u32 v8, v7, 4, v6"); e(f"v_add_u32 v{VX1}, 8192, v8")
    e("s_and_b32 s33, s4, 1"); e("s_lshl_b32 s33, s33, 2"); e("v_xor_b32 v7, s33, v5"); e("v_lshl_add_u32 v8, v7, 4, v6")
    e("s_lshl_b32 s33, s7, 15"); e("s_lshl_b32 s34, s4, 13"); e("s_add_u32 s33, s33, s34"); e(f"v_add_u32 v{VSB}, s33, v8")
    e("v_lshrrev_b32 v6, 2, v0"); e("s_and_b32 s33, s4, 1"); e("s_lshl_b32 s33, s33, 4"); e("v_add_u32 v6, s33, v6")
    e("s_movk_i32 s34, 3584"); e("v_mul_lo_u32 v6, v6, s34"); e("v_and_b32 v7, 3, v0"); e(f"v_lshl_add_u32 v{VT2G}, v7, 4, v6"); e(f"v_xor_b32 v{VT2U}, 32, v{VT2G}")
    e("v_bfe_u32 v6, v2, 1, 1"); e("v_lshlrev_b32 v6, 1, v6"); e("v_xor_b32 v6, v3, v6")
    e("s_lshl_b32 s33, s4, 3"); e("v_add_u32 v7, s33, v2"); e("v_mul_lo_u32 v7, v7, s34"); e(f"v_lshl_add_u32 v{VT4G}, v6, 4, v7"); e(f"v_xor_b32 v{VT4U}, 64, v{VT4G}")
    e("s_cmp_lg_u32 s3, 7"); e("s_cbranch_scc1 K1_NOPOLL"); e("v_mov_b32 v7, 0"); e("global_load_dword v12, v7, s[64:65] sc1")
    em.lab("K1_NOPOLL")
    for f in xb_items(em, 0, sq) + w_items(em, 0, sq) + w_items(em, 1, sq): f()
    common_scalars(em)
    e("s_mul_i32 s69, s7, 9"); e("s_lshl_b32 s69, s69, 10"); e(f"s_add_u32 s69, s69, {O_CS}")
    em.wait_vm(sq_row); stats_code(em, VST)
    e("s_cmp_lg_u32 s3, 7"); e("s_cbranch_scc1 K1_NN2")
    e(f"s_waitcnt vmcnt({em.vm - 1 - sq[('w',1)] + 14})") if False else None
    em.lab("K1_NLOOP0")
    e("s_waitcnt vmcnt(14)")
    em.lab("K1_NLOOP")
    e(f"v_readfirstlane_b32 s{STAG}, v12"); e(f"s_cmp_lg_u32 s{STAG}, 0"); e("s_cbranch_scc1 K1_NGOT")
    e("v_mov_b32 v7, 0"); e("global_load_dword v12, v7, s[64:65] sc1"); e("s_waitcnt vmcnt(0)")
    e("s_add_u32 s32, s32, 1"); e(f"s_cmp_lt_u32 s32, {SPIN_MAX}"); e("s_cbranch_scc1 K1_NLOOP")
    em.lab("K1_NGOT")
    e(f"v_mov_b32 v7, {L_NONCE}"); e("ds_write_b32 v7, v12"); e("s_waitcnt lgkmcnt(0)")
    em.lab("K1_NN2")
    em.wait_vm(sq[("w", 0)])
    e("s_barrier")
    after_b0(em)
    def run(items):
        for f in items: f()
    run(w_items(em, 2, sq) + xb_items(em, 1, sq))
    L = []
    def le(x): em.e(x)
    le(f"s_cmp_eq_u32 s{G}, 0"); le("s_cbranch_scc1 K1_MINI0")
    le(f"s_mul_i32 s72, s{KR}, {128*3584}")
    le(f"s_sub_u32 s73, s{G}, 2"); le("s_lshl_b32 s73, s73, 6"); le("s_add_u32 s73, s73, s81")
    le(f"s_cmp_eq_u32 s{G}, 1"); le("s_cselect_b32 s73, s80, s73"); le("s_add_u32 s73, s73, s72")
    le(f"s_mul_i32 s74, s4, {32*3584}"); le("s_add_u32 s73, s73, s74")
    le("s_and_b32 s74, s4, 1"); le(f"s_mul_i32 s74, s74, {16*3584}"); le("s_sub_u32 s73, s73, s74")
    t = Em()
    dma(t, SR_W1, VT2G, (73, 0), 76, MINI); dma(t, SR_W1, VT2G, (73, 16*3584), 76, MINI + 1024)
    dma(t, SR_W3, VT2U, (73, 0), 76, MINI + 2048); dma(t, SR_W3, VT2U, (73, 16*3584), 76, MINI + 3072)
    em.L += t.L
    le(f"s_cmp_lg_u32 s{G}, 1"); le("s_cbranch_scc1 K1_MINIDONE")
    le("s_add_u32 s73, s79, s72")
    le("v_lshrrev_b32 v2, 1, v0"); le("s_lshl_b32 s74, s4, 5"); le("v_add_u32 v2, s74, v2"); le("s_movk_i32 s74, 3584"); le("v_mul_lo_u32 v2, v2, s74")
    le("v_and_b32 v3, 1, v0"); le("v_lshl_add_u32 v2, v3, 4, v2")
    t = Em(); dma(t, SR_W1, 2, (73, 0), 75, MINI + 16384); dma(t, SR_W3, 2, (73, 0), 75, MINI + 16384 + 4096); em.L += t.L
    le("s_branch K1_MINIDONE")
    em.lab("K1_MINI0")
    le(f"s_lshl_b32 s73, s{KR}, 8")
    t = Em()
    dma(t, SR_BRE, VSB, (73, 0), 75, MINI); dma(t, SR_BIM, VSB, (73, 0), 75, MINI + 4096)
    dma(t, SR_BRE, VSB, (73, 128), 75, MINI + 8192); dma(t, SR_BIM, VSB, (73, 128), 75, MINI + 8192 + 4096)
    em.L += t.L
    em.lab("K1_MINIDONE")
    sq["mini"] = em.vm - 1
    run(w_items(em, 3, sq) + w_items(em, 4, sq))
    MINI_AT = 2
    GC = {t: 192 + 4*t for t in range(9)}
    def cs_issue():
        for t in range(9):
            holder[("cs", t)] = tagged(em, [f"s_add_u32 s33, s69, {t*1024}"], [f"buffer_load_dwordx4 {rng(GC[t],4)}, v{VLANE16}, s[24:27], s33 offen sc1"], [GC[t]+1, GC[t]+3], f"K1{C}_CS{t}")
    def cs_build():
        for t in range(9): holder[("cs", t)](em)
        def each(fn):
            for t in range(9): e(fn(GC[t]))
        each(lambda g: f"v_add_f32 v{g}, v{g}, v{g+2}"); each(lambda g: f"v_mov_b32 v{g+1}, v{g}"); e("s_nop 1")
        each(lambda g: f"v_permlane32_swap_b32 v{g}, v{g+1}"); e("s_nop 1")
        each(lambda g: f"v_add_f32 v{g+2}, v{g}, v{g+1}"); each(lambda g: f"v_cvt_pk_bf16_f32 v{g+3}, v{g+2}, v{g+2}")
        each(lambda g: f"v_lshlrev_b32 v{g+3}, 16, v{g+3}"); each(lambda g: f"v_sub_f32 v{g+3}, v{g+2}, v{g+3}")
        each(lambda g: f"v_cvt_pk_bf16_f32 v{g}, v{g+2}, v{g+3}"); each(lambda g: f"v_and_b32 v{g+2}, 0xffff0000, v{g}")
        each(lambda g: f"v_sub_f32 v{g+3}, v{g+3}, v{g+2}"); each(lambda g: f"v_cvt_pk_bf16_f32 v{g+1}, v{g+3}, 0")
        each(lambda g: f"v_mov_b32 v{g+2}, 0"); each(lambda g: f"v_mov_b32 v{g+3}, 0")
        e("v_lshlrev_b32 v2, 3, v0"); e(f"v_add_u32 v2, {L_CSF}, v2")
        for t in (0, 1, 4, 8): em.lds(f"ds_write_b64 v2, {rng(GC[t],2)} offset:{512*t}")
    def mini_compute():
        a = e; FRG, AC = 96, 112
        a(f"s_cmp_eq_u32 s{G}, 1"); a("s_cselect_b32 s33, 3, 2"); a("s_cmp_ge_u32 s4, s33"); a("s_cbranch_scc1 K1_MCDONE")
        for i in range(4): a(f"v_mov_b32 v{2+i}, 0x3f803f80")
        a(f"s_cmp_eq_u32 s{G}, 0"); a("s_cbranch_scc1 K1_MC0")
        def mf(h):
            a("s_waitcnt lgkmcnt(0)")
            for k4 in range(4):
                c = "0" if (h == 0 and k4 == 0) else rng(AC, 16)
                a(f"v_mfma_f32_32x32x16_bf16 {rng(AC,16)}, v[2:5], {rng(FRG+4*k4,4)}, {c}")
        a("s_cmp_eq_u32 s4, 2"); a("s_cbranch_scc1 K1_MC1N")
        a("v_bfe_u32 v6, v0, 4, 1"); a("v_lshrrev_b32 v7, 5, v0"); a("v_bfe_u32 v8, v0, 2, 2"); a("v_lshl_add_u32 v7, v7, 3, v8"); a("v_lshlrev_b32 v7, 6, v7")
        a("v_lshl_add_u32 v7, v6, 11, v7"); a("v_xor_b32 v6, s4, v6"); a("v_lshl_add_u32 v7, v6, 5, v7"); a("v_and_b32 v6, 3, v0"); a("v_lshl_add_u32 v6, v6, 3, v7"); a(f"v_add_u32 v6, {MINI}, v6")
        for h in range(2):
            for k4 in range(4):
                ks = 4*h + k4; o = (ks >> 1)*4096 + (ks & 1)*1024
                a(f"ds_read_b64_tr_b16 {rng(FRG+4*k4,2)}, v6 offset:{o}"); a(f"ds_read_b64_tr_b16 {rng(FRG+2+4*k4,2)}, v6 offset:{o+256}")
            mf(h)
        a("s_branch K1_MCM")
        em.lab("K1_MC1N")
        a("v_bfe_u32 v6, v0, 4, 1"); a("v_lshlrev_b32 v6, 12, v6"); a("v_lshrrev_b32 v7, 5, v0"); a("v_bfe_u32 v8, v0, 2, 2"); a("v_lshl_add_u32 v7, v7, 3, v8")
        a("v_lshl_add_u32 v6, v7, 5, v6"); a("v_and_b32 v7, 3, v0"); a("v_lshl_add_u32 v6, v7, 3, v6"); a(f"v_add_u32 v6, {MINI + 16384}, v6")
        for h in range(2):
            for k4 in range(4):
                o = (4*h + k4)*512
                a(f"ds_read_b64_tr_b16 {rng(FRG+4*k4,2)}, v6 offset:{o}"); a(f"ds_read_b64_tr_b16 {rng(FRG+2+4*k4,2)}, v6 offset:{o+128}")
            mf(h)
        a("s_branch K1_MCM")
        em.lab("K1_MC0")
        a("v_and_b32 v6, 31, v0"); a("v_lshrrev_b32 v7, 5, v0"); a("v_bfe_u32 v8, v6, 1, 3"); a("v_xor_b32 v8, v7, v8"); a("v_lshlrev_b32 v6, 7, v6"); a("v_lshl_add_u32 v6, v8, 4, v6")
        a(f"s_add_u32 s33, s76, {MINI}")
        for h in range(2):
            for k4 in range(4):
                a(f"v_xor_b32 v7, {32*k4}, v6"); a("v_add_u32 v7, s33, v7"); a(f"ds_read_b128 {rng(FRG+4*k4,4)}, v7 offset:{h*8192}")
            mf(h)
        em.lab("K1_MCM")
        a("s_nop 15"); a("s_nop 3")
        a(f"s_lshl_b32 s33, s{G}, 1"); a("s_add_u32 s33, s33, s4"); a("s_cmp_eq_u32 s4, 2"); a("s_cselect_b32 s33, 8, s33")
        a("s_mul_i32 s34, s7, 9"); a("s_add_u32 s33, s33, s34"); a("s_lshl_b32 s33, s33, 10")
        a(f"s_lshr_b32 s34, s{KR}, 1"); a("s_lshl_b32 s34, s34, 9"); a("s_add_u32 s33, s33, s34")
        a(f"s_and_b32 s34, s{KR}, 1"); a("s_lshl_b32 s34, s34, 3"); a("s_add_u32 s33, s33, s34")
        a(f"v_mov_b32 v4, v{AC}"); a(f"v_mov_b32 v5, s{STAG}"); a(f"s_add_u32 s33, s33, {O_CS}")
        a("s_mov_b32 exec_hi, 0"); a(f"buffer_store_dwordx2 v[4:5], v{VLANE16}, s[24:27], s33 offen sc0 sc1"); a("s_mov_b64 exec, -1")
        em.lab("K1_MCDONE")
    def side_job_now():
        R = 176
        ld, stl = k1b.side_job(R)
        m = {"s90": "s72", "s91": "s73", "s92": "s74", "s93": "s94", "s94": "s95", "s95": "s100", "s33": "s101", "s85": "s35", "s87": "s69x"}
        import re
        def tr(x): return re.sub(r"\bs(90|91|92|93|94|95|33|85|87)\b", lambda mm: m["s"+mm.group(1)], x).replace("s69x", "s71")
        class Wrap:
            def __init__(s_, em_): s_.em = em_
            def vmem(s_, x): return s_.em.vmem(tr(x))
            def wait_vm(s_, q): return s_.em.wait_vm(q)
            def e(s_, x): return s_.em.e(tr(x))
        w = Wrap(em)
        def do(seq):
            for x in seq:
                for y in (x if isinstance(x, list) else [x]):
                    y(w) if callable(y) else em.e(tr(y))
        return (lambda: do(ld)), (lambda: do(stl))
    sj_l, sj_s = side_job_now()
    XM = 12
    for i in range(1, 16):
        em.wait_vm(sq[("w", i)])
        if i % 2 == 0: em.wait_vm(sq[("xb", i//2)])
        if i == MINI_AT: em.wait_vm(sq["mini"])
        if i == 9: em.wait_vm(holder["sjst"])
        e("s_waitcnt lgkmcnt(0)"); em.lg_done = em.lg
        e("s_barrier")
        if i + 4 <= 15: run(w_items(em, i + 4, sq))
        if i % 2 == 0 and 3 <= i//2 + 2 <= 7: run(xb_items(em, i//2 + 2, sq))
        if i == MINI_AT: mini_compute()
        if i == MINI_AT + 1: run(xb_items(em, 2, sq))
        if i == 4: sj_l()
        if i == 7: sj_s(); holder["sjst"] = em.vm - 1; common_scalars(em)
        if i == 9:
            for l in ["s_cmp_lg_u32 s3, 4", "s_cbranch_scc1 K1_NOWTF", "s_lshl_b32 s33, s6, 4", "s_add_u32 s33, s33, s7", "s_lshl_b32 s33, s33, 4", f"s_add_u32 s33, s33, {O_DN + 8}",
                      f"v_mov_b32 v2, s{STAG}", f"v_mov_b32 v3, s{STAG}", "v_mov_b32 v4, 0", "s_mov_b64 exec, 1",
                      "buffer_store_dwordx2 v[2:3], v4, s[24:27], s33 offen sc0 sc1", "s_mov_b64 exec, -1"]: e(l)
            em.lab("K1_NOWTF")
        if i == 10: cs_issue(); stats_gather(em, holder, 232, C)
        if i == 13: cs_build(); emit(em, proc_stats(holder, 232, XM))
    e("s_waitcnt lgkmcnt(0)"); em.lg_done = em.lg
    e("s_barrier")
    wt_issue_early = False
    e("s_barrier")
    HB = 64
    e(f"s_mul_i32 s33, s4, {5*4096}"); e(f"v_add_u32 v2, s33, v{VLANE16}")
    for n in range(5):
        for r4 in range(4): holder[("h", n)] = em.lds(f"ds_read_b128 {rng(HB+16*n+4*r4,4)}, v2 offset:{n*4096 + r4*1024}")
    for n, t in enumerate(HAND):
        em.wait_lg(holder[("h", n)])
        e(f"v_mfma_f32_32x32x16_bf16 {rng(HB+16*n,16)}, {rng(GC[t],4)}, {rng(XM,4)}, {rng(HB+16*n,16)}")
    e("s_nop 7"); e("s_nop 3")
    emit(em, ffn_epi(HB, *FFN_ST[2]) + ffn_epi(HB+16, *FFN_ST[3]))
    e("s_barrier")
    emit(em, ffn_epi(HB+32, *FFN_ST[5]) + ffn_epi(HB+48, *FFN_ST[6]) + ffn_epi(HB+64, *FFN_ST[7]))
    wt_poll_prefetch(em, C)
    e("s_branch K1_FIN")
    return em.text()
```

```python
from common import *
import os
import k1b
from k1b import hstamp, STAG, O_ST, O_DN, SPIN_MAX, rng
NW = 8; KSW = NKS // NW; WP = 128; NP = 16
def wt_setup(em):
    e = em.e
    L = ["s_and_b32 s44, s2, 7", "s_lshr_b32 s45, s2, 3", "s_and_b32 s44, s44, 1", "s_lshl_b32 s44, s44, 2", "s_and_b32 s45, s45, 3", "s_add_u32 s44, s44, s45",
         f"s_add_u32 s12, s66, {OFF_WT}", "s_addc_u32 s13, s67, 0", f"s_mov_b32 s14, {SZ_WT}", "s_mov_b32 s15, 0x00020000",
         f"s_mul_i32 s46, s3, {KSW*1024}", f"s_mul_i32 s44, s44, {2*NKS*1024}", "s_add_u32 s44, s44, s46", f"s_add_u32 s45, s44, {NKS*1024}"]
    for l in L: e(l)
def wt_load(em, j):
    ks, a = j // 2, j % 2
    hi = (ks // 4)*4096; o = (ks % 4)*1024; sb = 44 + a
    if hi: em.e(f"s_add_u32 s46, s{sb}, {hi}"); sb = 46
    return em.vmem(f"buffer_load_dwordx4 {rng(WP+4*j,4)}, v{k1b.VLANE16}, s[12:15], s{sb} offen offset:{o} sc1")
def wt_poll_lines(label, va=2, vd=3):
    return [f"s_and_b32 s94, s2, 7", "s_lshr_b32 s95, s2, 3", "s_and_b32 s94, s94, 1", "s_lshl_b32 s94, s94, 2", "s_and_b32 s95, s95, 3", "s_add_u32 s94, s94, s95",
            "s_lshl_b32 s94, s94, 5", f"v_and_b32 v{va}, 31, v0", f"v_add_u32 v{va}, s94, v{va}", f"v_lshlrev_b32 v{va}, 4, v{va}", f"s_mov_b32 s94, {O_DN + 8}",
            f"{label}:", f"buffer_load_dword v{vd}, v{va}, s[24:27], s94 offen sc1", "s_waitcnt vmcnt(0)", f"v_cmp_ne_u32 vcc, s{STAG}, v{vd}", f"s_cbranch_vccz {label}_OK",
            "s_add_u32 s32, s32, 1", f"s_cmp_lt_u32 s32, {SPIN_MAX}", f"s_cbranch_scc1 {label}", f"{label}_OK:"]
def gen_part2(em):
    DA = int(os.environ.get("K2DA", "5"))
    e = em.e
    def dstamp(n):
        if DIAG: e("s_memtime s[34:35]"); e("s_waitcnt lgkmcnt(0)"); e(f"s_sub_u32 s{n}, s34, s98")
    def lines(L):
        for l in L:
            if l.endswith(":"): em.L.append(l)
            else: e(l)
    e("s_load_dwordx2 s[36:37], s[0:1], %d" % KA['dsk'])
    e(f"s_mov_b32 s74, s{STAG}")
    e("s_cmp_lg_u32 s5, 0"); e("s_cbranch_scc1 P2_CH1")
    lines(wt_poll_lines("P2_WP0")); wt_setup(em)
    e("s_barrier")
    t = Em()
    for j in range(2*NP): wt_load(t, j)
    em.L += t.L
    e("s_branch P2_GOB")
    em.lab("P2_CH1")
    e("s_waitcnt vmcnt(0)")
    e("s_barrier")
    e("s_cmp_lg_u32 s3, 4"); e("s_cbranch_scc1 P2_GOB")
    dstamp(70); hstamp(em, 4)
    e("s_and_b32 s4, s2, 7"); e("s_lshr_b32 s40, s2, 3"); e("s_lshr_b32 s38, s4, 1"); e("s_lshl_b32 s38, s38, 3"); e("s_lshr_b32 s40, s40, 2"); e("s_add_u32 s38, s38, s40")
    e("s_lshl_b32 s40, s6, 4"); e("s_add_u32 s40, s40, s7"); e("s_lshl_b32 s40, s40, 4"); e(f"s_add_u32 s40, s40, {O_DN}")
    e("v_mov_b32 v12, s74"); e("v_mov_b32 v13, s74"); e("v_mov_b32 v14, 0"); e("s_mov_b64 exec, 1")
    e("buffer_store_dwordx2 v[12:13], v14, s[24:27], s40 offen sc0 sc1"); e("s_mov_b64 exec, -1")
    e("s_lshr_b32 s40, s38, 1"); e("s_lshl_b32 s40, s40, 4")
    e("v_and_b32 v12, 15, v0"); e("v_add_u32 v12, s40, v12"); e("v_lshlrev_b32 v12, 4, v12"); e(f"s_mov_b32 s40, {O_DN}")
    em.lab("P2_POLL")
    e("buffer_load_dword v13, v12, s[24:27], s40 offen sc1"); e("s_waitcnt vmcnt(0)"); e("v_cmp_ne_u32 vcc, s74, v13"); e("s_cbranch_vccz P2_GOB")
    e("s_add_u32 s32, s32, 1"); e(f"s_cmp_lt_u32 s32, {SPIN_MAX}"); e("s_cbranch_scc1 P2_POLL")
    em.lab("P2_GOB")
    e("s_barrier")
    em.lab("P2_JOIN")
    dstamp(71)
    e("s_waitcnt lgkmcnt(0)")
    e("s_and_b32 s4, s2, 7"); e("s_lshr_b32 s5, s2, 3"); e("s_lshr_b32 s38, s4, 1"); e("s_and_b32 s39, s4, 1")
    e("s_lshl_b32 s38, s38, 3"); e("s_lshr_b32 s40, s5, 2"); e("s_add_u32 s38, s38, s40")
    e("s_lshl_b32 s39, s39, 2"); e("s_and_b32 s40, s5, 3"); e("s_add_u32 s39, s39, s40")
    srd(em, 28, 36, 37, D*2); srd(em, 16, 62, 63, NROW*D*4)
    e("v_lshlrev_b32 v2, 4, v0")
    e(f"s_mul_i32 s41, s3, {KSW*1024}"); e(f"s_mul_i32 s42, s38, {2*NKS*1024}"); e("s_add_u32 s42, s42, s41"); e(f"s_add_u32 s43, s42, {NKS*1024}")
    em.vm = 2*NP; em.vm_done = 0; em.lg = 0; em.lg_done = 0
    ACC = 64; AR = 16; EP = 56
    assert AR + DA*8 <= EP
    def acc(a,b): return ACC + (2*a+b)*16
    wseq = {ks: 2*ks+1 for ks in range(NP)}; aseq = {}
    def soff(base, ks, tmp):
        hi = (ks // 4)*4096
        if hi == 0: return base, (ks % 4)*1024
        e(f"s_add_u32 s{tmp}, s{base}, {hi}"); return tmp, (ks % 4)*1024
    def issue_w(ks):
        r = WP + (ks % NP)*8
        s0, o = soff(44, ks, 46); em.vmem(f"buffer_load_dwordx4 {rng(r,4)}, v2, s[12:15], s{s0} offen offset:{o} sc1")
        s1, o = soff(45, ks, 47); wseq[ks] = em.vmem(f"buffer_load_dwordx4 {rng(r+4,4)}, v2, s[12:15], s{s1} offen offset:{o} sc1")
    def issue_a(ks):
        r = AR + (ks % DA)*8
        s0, o = soff(42, ks, 46); em.vmem(f"buffer_load_dwordx4 {rng(r,4)}, v2, s[20:23], s{s0} offen offset:{o} sc1")
        s1, o = soff(43, ks, 47); aseq[ks] = em.vmem(f"buffer_load_dwordx4 {rng(r+4,4)}, v2, s[20:23], s{s1} offen offset:{o} sc1")
    for ks in range(min(DA, KSW)): issue_a(ks)
    NREG = 8; NQ4 = 2
    e("v_and_b32 v3, 31, v0"); e("v_lshrrev_b32 v4, 5, v0")
    e("v_bfe_u32 v5, v3, 2, 1"); e("v_lshlrev_b32 v5, 4, v5"); e("v_lshrrev_b32 v6, 3, v3"); e("v_lshl_add_u32 v5, v6, 2, v5"); e("v_and_b32 v6, 3, v3"); e("v_add_u32 v5, v5, v6")
    e("s_lshr_b32 s51, s3, 1"); e("s_and_b32 s46, s51, 1"); e("s_lshr_b32 s47, s51, 1")
    e("s_lshl_b32 s48, s38, 6"); e("s_lshl_b32 s46, s46, 5"); e("s_add_u32 s48, s48, s46"); e("v_add_u32 v5, s48, v5")
    e("s_lshl_b32 s49, s39, 6"); e("s_lshl_b32 s47, s47, 5"); e("s_add_u32 s49, s49, s47"); e("s_and_b32 s52, s3, 1"); e("s_lshl_b32 s52, s52, 4"); e("s_add_u32 s49, s49, s52")
    e("v_lshlrev_b32 v6, 2, v4"); e("v_add_u32 v6, s49, v6")
    e("v_lshlrev_b32 v7, 3, v5"); e("v_lshlrev_b32 v8, 10, v5"); e("v_lshl_add_u32 v8, v6, 1, v8"); e("v_lshlrev_b32 v9, 1, v6")
    e("v_lshlrev_b32 v10, 11, v5"); e("v_lshl_add_u32 v10, v6, 2, v10")
    XS = EP; DS = EP+4; ST = 12; T = 3
    em.vmem(f"buffer_load_dwordx2 {rng(ST,2)}, v7, s[24:27], 0 offen offset:{O_ST} sc1")
    for q in range(NQ4): em.vmem(f"buffer_load_dwordx2 {rng(XS+2*q,2)}, v8, s[8:11], 0 offen offset:{16*q}")
    for q in range(NQ4): sq_ep = em.vmem(f"buffer_load_dwordx2 {rng(DS+2*q,2)}, v9, s[28:31], 0 offen offset:{16*q}")
    rq = [lambda: em.wait_vm(sq_ep), f"v_lshlrev_b32 v14, 16, v{ST}", f"v_and_b32 v15, 0xffff0000, v{ST}", "v_rcp_f32 v15, v15", "s_nop 0"]
    RESR = {}
    for q in range(NQ4):
        for d2 in range(2):
            xr = XS + 2*q + d2; dr = DS + 2*q + d2
            RESR[4*q+2*d2] = xr; RESR[4*q+2*d2+1] = dr
            rq += [f"v_lshlrev_b32 v{T}, 16, v{xr}", f"v_and_b32 v{T+1}, 0xffff0000, v{xr}", f"v_sub_f32 v{T+2}, v{T}, v14", f"v_sub_f32 v{T+3}, v{T+1}, v14",
                f"v_cvt_pk_bf16_f32 v{T+2}, v{T+2}, v{T+3}", f"v_lshlrev_b32 v{T+3}, 16, v{T+2}", f"v_and_b32 v{T+2}, 0xffff0000, v{T+2}",
                f"v_mul_f32 v{T+3}, v{T+3}, v15", f"v_mul_f32 v{T+2}, v{T+2}, v15",
                f"v_cvt_pk_bf16_f32 v{T+2}, v{T+3}, v{T+2}", f"v_lshlrev_b32 v{T+3}, 16, v{T+2}", f"v_and_b32 v{T+2}, 0xffff0000, v{T+2}",
                f"v_lshlrev_b32 v{T+4}, 16, v{dr}", f"v_and_b32 v{T+5}, 0xffff0000, v{dr}", f"v_mul_f32 v{T+3}, v{T+3}, v{T+4}", f"v_mul_f32 v{T+2}, v{T+2}, v{T+5}",
                f"v_cvt_pk_bf16_f32 v{T+2}, v{T+3}, v{T+2}", f"v_lshlrev_b32 v{T+3}, 16, v{T+2}", f"v_and_b32 v{T+2}, 0xffff0000, v{T+2}",
                f"v_add_f32 v{xr}, v{T+3}, v{T}", f"v_add_f32 v{dr}, v{T+2}, v{T+1}"]
    assert T + 5 < 9 or True
    for ks in range(KSW):
        em.wait_vm(max(wseq[ks], aseq[ks]))
        w = WP + (ks % NP)*8; a_ = AR + (ks % DA)*8
        for a in range(2):
            for b in range(2):
                c = "0" if ks == 0 else rng(acc(a,b),16)
                e(f"v_mfma_f32_32x32x16_bf16 {rng(acc(a,b),16)}, {rng(w+4*a,4)}, {rng(a_+4*b,4)}, {c}")
                if ks >= 3:
                    for _ in range(4):
                        if rq:
                            x = rq.pop(0); x() if callable(x) else e(x)
        if ks + NP < KSW: issue_w(ks + NP)
        if ks + DA < KSW: issue_a(ks + DA)
    while rq:
        x = rq.pop(0); x() if callable(x) else e(x)
    dstamp(72); hstamp(em, 6)
    e("s_nop 15")
    e(f"s_mul_i32 s50, s3, {NQ4*1024}"); e("v_add_u32 v11, s50, v2"); e("v_add_u32 v9, 65536, v11")
    for o in range(NW):
        base = ACC + o*NREG
        for r4 in range(NQ4):
            off = o*NW*NQ4*1024 + r4*1024
            em.lds(f"ds_write_b128 v{11 if off < 65536 else 9}, {rng(base+4*r4,4)} offset:{off % 65536}")
    e("s_waitcnt lgkmcnt(0)"); em.lg_done = em.lg
    e("s_barrier")
    e(f"s_mul_i32 s50, s3, {NW*NQ4*1024}"); e("v_add_u32 v11, s50, v2")
    RD = WP
    for w in range(NW):
        for r4 in range(NQ4): em.lds(f"ds_read_b128 {rng(RD+w*NREG+r4*4,4)}, v11 offset:{w*NQ4*1024 + r4*1024}")
    e("s_waitcnt lgkmcnt(0)"); em.lg_done = em.lg
    n = NW
    while n > 1:
        for w in range(n//2):
            for i in range(NREG): e(f"v_add_f32 v{RD+w*NREG+i}, v{RD+w*NREG+i}, v{RD+(w+n//2)*NREG+i}")
        n //= 2
    for i in range(NREG): e(f"v_add_f32 v{RD+i}, v{RD+i}, v{RESR[i]}")
    dstamp(73)
    for q in range(NQ4): em.vmem(f"buffer_store_dwordx4 {rng(RD+4*q,4)}, v10, s[16:19], 0 offen offset:{32*q}")
```
